```python
import torch

def _softmax(x, axis=-1):
    return torch.softmax(x, dim=axis)
def _gelu(x):
    return torch.nn.functional.gelu(x, approximate="tanh")
def _silu(x):
    return torch.nn.functional.silu(x)
def _sigmoid(x):
    return torch.sigmoid(x)
def _layernorm(x, axis=-1, eps=1e-5):
    m = x.mean(dim=axis, keepdim=True)
    v = x.var(dim=axis, keepdim=True, unbiased=False)
    return (x - m) / torch.sqrt(v + eps)
def _scatter_add(tgt, idx, src, axis=0):
    return tgt.clone().index_add_(axis, idx, src)
def _segment_sum(src, seg, n):
    out = torch.zeros((n,) + src.shape[1:], dtype=src.dtype)
    return out.index_add_(0, seg, src)
def _pad(x, pw):
    flat = tuple(v for pair in reversed(pw) for v in pair)
    return torch.nn.functional.pad(x, flat)

kernel_name = 'sequential_preLN__linear_kernel_hedgehog__dense_activation_mish__prompt'

def setup_inputs():

    _w = (lambda a: (lambda t: t.to(torch.bfloat16) if t.is_floating_point() else t)(torch.as_tensor(a)))
    def _A_setup():
        B, S, D, H = 1, 2048, 448, 16
        Dh = D // H
        return {
            "x": _w((lambda *s: torch.randn(*s, dtype=torch.bfloat16) * 0.05)(B, S, D)),
            "wqkv": _w((lambda *s: torch.randn(*s, dtype=torch.bfloat16) * 0.2)(D, 3 * D)),
            "w_phi": _w((lambda *s: torch.randn(*s, dtype=torch.bfloat16) * 0.2)(H, Dh, Dh) * (Dh ** -0.5)),
            "wo": _w((lambda *s: torch.randn(*s, dtype=torch.bfloat16) * 0.05)(D, D)),
        }
    _A_in = _A_setup()

    def _B_setup():
        B, S, D, F = 1, 2048, 448, 1792
        return {
            "x": _w((lambda *s: torch.randn(*s, dtype=torch.bfloat16) * 0.05)(B, S, D)),
            "w1": _w((lambda *s: torch.randn(*s, dtype=torch.bfloat16) * 1.6)(D, F) * (D ** -0.5)),
            "b1": _w((lambda *s: torch.randn(*s, dtype=torch.bfloat16) * 0.4)(F)),
            "w2": _w((lambda *s: torch.randn(*s, dtype=torch.bfloat16) * 0.1)(F, D) * (F ** -0.5)),
        }
    _B_in = _B_setup()

    return {
        "A_x": _A_in["x"],
        "A_wqkv": _A_in["wqkv"],
        "A_w_phi": _A_in["w_phi"],
        "A_wo": _A_in["wo"],
        "B_x": _B_in["x"],
        "B_w1": _B_in["w1"],
        "B_b1": _B_in["b1"],
        "B_w2": _B_in["w2"],
    }

def reference(A_x, A_wqkv, A_w_phi, A_wo, B_x, B_w1, B_b1, B_w2):
    def _A_ref(x, wqkv, w_phi, wo):
        B, S, D = x.shape
        H = 16; Dh = D // H
        qkv = (lambda x, *d: x.permute(*d))((x @ wqkv).reshape(B, S, 3, H, Dh), 2, 0, 3, 1, 4)
        q, k, v = qkv[0], qkv[1], qkv[2]
        pq = torch.einsum("bhsd,hdf->bhsf", q, w_phi)
        pk = torch.einsum("bhsd,hdf->bhsf", k, w_phi)
        phi_q = torch.concatenate([_softmax(pq, axis=-1), _softmax(-pq, axis=-1)], axis=-1)
        phi_k = torch.concatenate([_softmax(pk, axis=-1), _softmax(-pk, axis=-1)], axis=-1)
        kv = torch.einsum("bhsf,bhsd->bhfd", phi_k, v)
        z  = torch.einsum("bhsf->bhf", phi_k)
        num = torch.einsum("bhqf,bhfd->bhqd", phi_q, kv)
        den = torch.einsum("bhqf,bhf->bhq", phi_q, z)[..., None] + 1e-6
        o = num / den
        return (lambda x, *d: x.permute(*d))(o, 0, 2, 1, 3).reshape(B, S, D) @ wo

    def _B_ref(x, w1, b1, w2):
        h = torch.einsum("bsd,df->bsf", x, w1) + b1
        sp = torch.log1p(torch.exp(-torch.abs(h))) + torch.where(h > 0, h, torch.zeros_like(h))
        act = h * torch.tanh(sp)
        return torch.einsum("bsf,fd->bsd", act, w2)

    x = A_x
    h = x + _A_ref(_layernorm(x, axis=-1), A_wqkv, A_w_phi, A_wo)
    h2 = h + _B_ref(_layernorm(h, axis=-1), B_w1, B_b1, B_w2)
    return h2
```

```python
import re

_reg_re = re.compile(r'^(-?)(abs\()?([vsa])(\d+|\[(\d+):(\d+)\])\)?$')

def regs_of(tok):
    tok = tok.strip()
    if tok in ('vcc',): return {('s', 106), ('s', 107)}
    if tok == 'vcc_lo': return {('s', 106)}
    if tok == 'vcc_hi': return {('s', 107)}
    if tok == 'exec': return {('s', 126), ('s', 127)}
    if tok == 'exec_lo': return {('s', 126)}
    if tok == 'exec_hi': return {('s', 127)}
    if tok == 'm0': return {('s', 124)}
    m = _reg_re.match(tok)
    if not m: return set()
    f = m.group(3)
    if m.group(5) is not None:
        return {(f, i) for i in range(int(m.group(5)), int(m.group(6)) + 1)}
    return {(f, int(m.group(4)))}

TRANS = ('v_exp_f32', 'v_log_f32', 'v_rcp_f32', 'v_rsq_f32', 'v_sqrt_f32', 'v_sin_f32', 'v_cos_f32')

class Ins:
    __slots__ = ('text', 'mn', 'kind', 'wr', 'rd', 'passes', 'srcC', 'srcAB', 'states', 'stdata', 'lds_dma')

def split_ops(s):
    out = []; depth = 0; cur = ''
    for ch in s:
        if ch in '[(': depth += 1
        if ch in '])': depth -= 1
        if ch == ',' and depth == 0:
            out.append(cur.strip()); cur = ''
        else: cur += ch
    if cur.strip(): out.append(cur.strip())
    return out

def parse(text):
    I = Ins(); I.text = text
    t = text.split(';')[0].strip()
    parts = t.split(None, 1)
    mn = parts[0]; I.mn = mn
    rest = parts[1] if len(parts) > 1 else ''
    ops = split_ops(rest)
    mods = ''
    if ops:
        li = ops[-1].split(None, 1)
        ops[-1] = li[0]
        mods = li[1] if len(li) > 1 else ''
    I.wr = set(); I.rd = set(); I.passes = 0; I.srcC = set(); I.srcAB = set(); I.states = 1; I.stdata = set(); I.lds_dma = False
    R = [regs_of(o) for o in ops]
    if mn == 's_nop':
        I.kind = 'nop'; I.states = int(ops[0], 0) + 1
    elif mn.startswith('v_mfma'):
        I.kind = 'mfma'; I.wr = R[0]; I.srcAB = R[1] | R[2]; I.srcC = R[3]; I.rd = I.srcAB | I.srcC
        I.passes = 8 if '32x32' in mn else 4
    elif mn.startswith('v_'):
        I.kind = 'valu'
        base = re.sub(r'_(e32|e64|dpp|sdwa)$', '', mn)
        if base in TRANS: I.kind = 'trans'
        if base.startswith('v_dot2'): I.kind = 'dot'
        if base.startswith('v_permlane'):
            I.kind = 'perm'; I.wr = R[0] | R[1]; I.rd = R[0] | R[1]
        elif base in ('v_add_co_u32', 'v_sub_co_u32', 'v_addc_co_u32', 'v_subb_co_u32'):
            I.wr = R[0] | R[1]; I.rd = set().union(*R[2:])
        else:
            I.wr = R[0]; I.rd = set().union(*R[1:]) if len(R) > 1 else set()
            if base in ('v_fmac_f32', 'v_dot2c_f32_bf16', 'v_writelane_b32') or mn.endswith('_dpp') or mn.endswith('_sdwa'): I.rd |= R[0]
            if base.startswith('v_cmpx'): I.wr |= regs_of('exec')
        if mn.endswith('_dpp') or 'row_' in mods or 'quad_perm' in mods: I.kind = 'dpp'
        if base in ('v_readfirstlane_b32', 'v_readlane_b32'): I.kind = 'rdlane'
    elif mn.startswith('ds_'):
        I.kind = 'ds'
        if mn.startswith('ds_read') or mn.startswith('ds_bpermute') or mn.startswith('ds_swizzle') or mn.startswith('ds_permute'):
            I.wr = R[0]; I.rd = set().union(*R[1:]) if len(R) > 1 else set()
        else:
            I.rd = set().union(*R)
        if 'addtid' in mn: I.lds_dma = True
    elif mn.startswith('buffer_') or mn.startswith('global_'):
        I.kind = 'vmem'
        allm = (mods + ' ' + (ops[-1] if ops else ''))
        if 'lds' in mods.split() or 'load_lds' in mn:
            I.lds_dma = True; I.rd = set().union(*R)
        elif 'load' in mn:
            I.wr = R[0]; I.rd = set().union(*R[1:])
            if 'd16' in mn: I.rd |= R[0]
        elif 'store' in mn:
            I.rd = set().union(*R)
            d = R[0] if mn.startswith('buffer_') else R[1]
            if 'x3' in mn or 'x4' in mn: I.stdata = d
        elif 'atomic' in mn:
            I.rd = set().union(*R)
            if 'sc0' in mods.split(): I.wr = R[0]
        else:
            pass
    elif mn.startswith('s_'):
        I.kind = 'salu'
        if mn.startswith('s_cmp') or mn.startswith('s_cbranch') or mn in ('s_branch', 's_waitcnt', 's_barrier', 's_sleep', 's_setprio', 's_endpgm', 's_bitcmp1_b32', 's_bitcmp0_b32'):
            I.rd = set().union(*R) if R else set()
        else:
            I.wr = set(R[0]) if R else set(); I.rd = set().union(*R[1:]) if len(R) > 1 else set()
            if 'saveexec' in mn: I.wr |= regs_of('exec')
    else:
        raise ValueError('unknown instr ' + text)
    return I

VALU_KINDS = ('valu', 'trans', 'dot', 'perm', 'dpp', 'rdlane')
def isv(s): return {r for r in s if r[0] in 'va'}
def iss(s): return {r for r in s if r[0] == 's'}

def need(P, C):
    n = 0
    pv = P.kind in VALU_KINDS; cv = C.kind in VALU_KINDS
    if P.kind == 'mfma':
        D = P.wr
        big = {4: 8, 8: 12}[P.passes]
        if C.kind == 'mfma':
            if C.srcAB & D: n = max(n, big)
            if C.srcC & D:
                if not (C.srcC == D and C.passes == P.passes): n = max(n, {4: 6, 8: 10}[P.passes])
            elif C.wr & D:
                n = max(n, big)
        elif (C.rd | C.wr) & D:
            n = max(n, big)
        if cv and (C.wr & P.srcC): n = max(n, {4: 3, 8: 7}[P.passes])
    if pv:
        w = isv(P.wr); ws = iss(P.wr)
        if C.kind == 'mfma' and (C.rd & w): n = max(n, 2)
        if C.kind == 'mfma' and (ws & regs_of('exec')): n = max(n, 4)
        if C.kind == 'perm' and (C.rd & w): n = max(n, 2)
        if C.kind == 'dpp' and (C.rd & w): n = max(n, 2)
        if C.kind == 'rdlane' and (C.rd & w): n = max(n, 1)
        if P.kind == 'trans' and cv and C.kind != 'trans' and (C.rd & w): n = max(n, 1)
        if P.kind == 'trans' and C.kind == 'trans' and (C.rd & w): n = max(n, 1)
        if P.kind == 'dot' and ((C.rd | C.wr) & w):
            same = (C.mn == P.mn) and (C.wr & w) and C.kind == 'dot'
            if not same: n = max(n, 3)
        if ws:
            if cv and (C.rd & ws): n = max(n, 4 if C.kind == 'rdlane' else 2)
            if C.kind == 'vmem' and (C.rd & ws): n = max(n, 5)
            if C.kind == 'salu' and (C.rd & ws): n = max(n, 1)
            if cv and C.mn.startswith('v_cndmask') and (ws & regs_of('vcc')): n = max(n, 2)
            if C.mn.startswith('s_cbranch_vcc') and (ws & regs_of('vcc')): n = max(n, 1)
        if P.mn.endswith('_sdwa') and cv and ((C.rd | C.wr) & w): n = max(n, 1)
    if P.kind == 'salu' and (('s', 124) in P.wr) and C.lds_dma: n = max(n, 1)
    if P.kind == 'vmem' and P.stdata and (C.wr & P.stdata): n = max(n, 2 if cv else 1)
    return n

class Asm:
    def __init__(self):
        self.lines = []
        self.hist = []
        self.nops = 0
        self.lab = 0
    def raw(self, s): self.lines.append(s)
    def label(self, name):
        self.lines.append(name + ':')
    def newlabel(self, p='L'):
        self.lab += 1
        return f'{p}_{self.lab}'
    def fence(self, n=12):
        worst = 0; d = 0
        for P in reversed(self.hist):
            w = 0
            if P.kind == 'mfma': w = {4: 8, 8: 12}[P.passes]
            elif P.kind in VALU_KINDS: w = 5 if iss(P.wr) else 3
            elif P.kind == 'vmem' and P.stdata: w = 2
            elif P.kind == 'salu' and (('s', 124) in P.wr): w = 1
            worst = max(worst, w - d); d += P.states
            if d > 24: break
        if worst > 0: self(f's_nop {worst-1}')
    def __call__(self, text):
        for t in text.split('\n'):
            t = t.strip()
            if not t: continue
            if t.startswith(';') or t.startswith('.'):
                self.lines.append(t); continue
            if t.endswith(':'):
                self.label(t[:-1]); continue
            I = parse(t)
            d = 0; pad = 0
            for P in reversed(self.hist):
                pad = max(pad, need(P, I) - d)
                d += P.states
                if d >= 20: break
            if pad > 0:
                N = parse(f's_nop {pad-1}')
                self.lines.append(f'  s_nop {pad-1}'); self.hist.append(N); self.nops += 1
            self.lines.append('  ' + t)
            self.hist.append(I)
            if len(self.hist) > 40: self.hist = self.hist[-30:]
    def text(self): return '\n'.join(self.lines)

def vr(a, n=1):
    return f'v{a}' if n == 1 else f'v[{a}:{a+n-1}]'
def sr(a, n=1):
    return f's{a}' if n == 1 else f's[{a}:{a+n-1}]'
```

```python
import sys
from asmdsl import *

KNAME = "sequential_preLN__linear_kernel_hedgehog__dense_activation_mish__prompt_kernel"

WS_TAB, WS_FIN, WS_PART, WS_GRP = 0x1000, 0x20000, 0x200000, 0x400000
G_V, G_O, G_H, G_FO, G_FH, G_FA, G_ACT = 0, 0x80000, 0xC0000, 0xF8000, 0xF9000, 0xFA000, 0x100000
WS_DBG = 0x2000000
L_W = 114688
L_PHIW = 155648
L_PHI, PHI_P = 0, 136
L_V, V_P = 34816, 72
L_W1, L_WO, L_SCR = 0, 57344, 114688
sW, sG, sI, sROLE, sRB, sHP, sCB, sR64 = 3, 4, 5, 6, 7, 8, 9, 10
sMODE, sTMO = 11, 12
sE = 38
SRD_X, SRD_QKV, SRD_G, SRD_S, SRD_PHI, SRD_WO, SRD_W1, SRD_W2, SRD_B1, SRD_OUT = 40, 44, 48, 52, 56, 60, 64, 68, 72, 76
LOG2E = 0x3fb8aa3b
TMO = 40000

class VM:
    def __init__(s): s.q = []
    def issue(s, tag): s.q.append(tag)
    def wait(s, a, tag):
        idx = max(i for i, t in enumerate(s.q) if t == tag)
        n = len(s.q) - 1 - idx
        assert n < 64
        a(f's_waitcnt vmcnt({n})'); s.q = s.q[idx + 1:]
    def drain(s, a): a('s_waitcnt vmcnt(0)'); s.q = []
    def copy(s):
        v = VM(); v.q = list(s.q); return v

def srd(a, r, lo, size):
    a(f's_mov_b32 s{r}, s{lo}\ns_and_b32 s{r+1}, s{lo+1}, 0xffff\ns_mov_b32 s{r+2}, {size}\ns_mov_b32 s{r+3}, 0x20000')

def gen(prof=False, stop=99, force_slow=False):
    a = Asm()
    vm = VM()
    stamp_n = [0]
    vLANE, vE, vST = 1, 250, 255
    def stamp(idx):
        if not prof: return
        a('s_memrealtime s[98:99]\ns_waitcnt lgkmcnt(0)')
        a(f'v_writelane_b32 v{vST}, s98, {idx}')
    def spin(lbl_retry, lbl_done):
        a(f's_sub_u32 s{sTMO}, s{sTMO}, 1')
        a(f's_cbranch_scc1 {lbl_done}')
        a('s_sleep 1')
        a(f's_branch {lbl_retry}')
    def poll_tagged(loads, first_issued=False):
        lr, ld, lc = a.newlabel('Lpt'), a.newlabel('Lpd'), a.newlabel('Lpc')
        if first_issued: a(f's_branch {lc}')
        a.label(lr)
        for t, _ in loads: a(t)
        a.label(lc)
        a('s_waitcnt vmcnt(0)')
        a('s_mov_b64 s[16:17], 0')
        for n, (_, vb) in enumerate(loads):
            p = 18 + 2 * (n & 3)
            a(f'v_cmp_ne_u64 s[{p}:{p+1}], s[{sE}:{sE+1}], v[{vb+2}:{vb+3}]')
            if n >= 1:
                q = 18 + 2 * ((n - 1) & 3); a(f's_or_b64 s[16:17], s[16:17], s[{q}:{q+1}]')
        q = 18 + 2 * ((len(loads) - 1) & 3)
        a('s_nop 1')
        a(f's_or_b64 s[16:17], s[16:17], s[{q}:{q+1}]')
        a(f's_cbranch_scc0 {ld}')
        spin(lr, ld)
        a.label(ld)
        vm.q = []
    def poll_flags(voff, soff, vt):
        lr, ld = a.newlabel('Lfr'), a.newlabel('Lfd')
        a.label(lr)
        a(f'buffer_load_dwordx2 v[{vt}:{vt+1}], v{voff}, s[{SRD_G}:{SRD_G+3}], {soff} offen sc1')
        a('s_waitcnt vmcnt(0)')
        a(f'v_cmp_ne_u64 vcc, s[{sE}:{sE+1}], v[{vt}:{vt+1}]')
        a(f's_cbranch_vccz {ld}')
        spin(lr, ld)
        a.label(ld)
        vm.q = []
    def publish(stores, flag_soff_reg, vz):
        ls, le = a.newlabel('Lslow'), a.newlabel('Lpe')
        a(f's_cmp_lg_u32 s{sMODE}, 0')
        a(f's_cbranch_scc1 {ls}')
        for sc in ('', ' sc1'):
            for t in stores: a(t + sc)
            a('s_waitcnt vmcnt(0)')
            a('s_mov_b64 exec, 1')
            a(f'buffer_store_dwordx2 v[{vE}:{vE+1}], v{vz}, s[{SRD_G}:{SRD_G+3}], s{flag_soff_reg} offen' + sc)
            a('s_mov_b64 exec, -1')
            if sc == '':
                a(f's_branch {le}'); a.label(ls)
        a.label(le)
        vm.q = ['flag']
    def half_combine(v, t, op):
        a(f'v_mov_b32 v{t}, v{v}')
        a(f'v_permlane32_swap_b32 v{t}, v{v}')
        a(f'{op} v{v}, v{t}, v{v}')
    def dump(vb, n, slot):
        a('s_waitcnt vmcnt(0) lgkmcnt(0)')
        a.fence()
        a(f's_add_u32 s80, s36, {WS_DBG + slot * 0x2000000}\ns_addc_u32 s81, s37, 0')
        a(f's_lshl_b32 s82, s2, 3\ns_add_u32 s82, s82, s{sW}\ns_mul_i32 s82, s82, {64 * 256}')
        a(f'v_lshl_add_u32 v249, v{vLANE}, 2, s82')
        for r in range(n):
            a(f'global_store_dword v249, v{vb + r}, s[80:81] offset:{(r % 16) * 256}')
            if r % 16 == 15: a('v_add_u32 v249, 4096, v249')
        a('s_waitcnt vmcnt(0)')
        vm.q = []

    a('s_cmp_ge_u32 s2, 256')
    a('s_cbranch_scc1 L_end')
    a('s_load_dwordx16 s[16:31], s[0:1], 0')
    a('s_load_dwordx4 s[32:35], s[0:1], 64')
    a('s_load_dwordx2 s[36:37], s[0:1], 80')
    if prof: a(f'v_mov_b32 v{vST}, 0')
    a(f'v_and_b32 v{vLANE}, 63, v0')
    a('v_lshrrev_b32 v5, 6, v0')
    a(f'v_readfirstlane_b32 s{sW}, v5')
    a(f's_and_b32 s{sG}, s2, 7\ns_lshr_b32 s{sI}, s2, 3\ns_lshr_b32 s{sROLE}, s{sI}, 4')
    a(f's_bfe_u32 s{sRB}, s{sI}, 0x10003\ns_and_b32 s{sHP}, s{sI}, 7')
    a(f's_mul_i32 s{sR64}, s{sI}, 37\ns_lshr_b32 s{sR64}, s{sR64}, 8\ns_mul_i32 s80, s{sR64}, 7\ns_sub_u32 s{sCB}, s{sI}, s80')
    a(f's_mov_b32 s{sTMO}, {TMO}')
    a(f'v_lshrrev_b32 v6, 3, v{vLANE}')
    a(f'v_lshrrev_b32 v7, 4, v{vLANE}')
    a(f'v_and_b32 v8, 7, v{vLANE}')
    a('v_xor_b32 v8, v8, v7\nv_lshlrev_b32 v8, 4, v8')
    a('v_mul_u32_u24 v2, 896, v6\nv_add_u32 v2, v2, v8')
    a('v_xor_b32 v3, 64, v2\nv_add_u32 v3, 6144, v3')
    a(f'v_lshrrev_b32 v8, 2, v{vLANE}\nv_xor_b32 v8, v8, v7\nv_and_b32 v8, 1, v8')
    a('v_mul_u32_u24 v8, 56, v8')
    a(f'v_and_b32 v9, 3, v{vLANE}\nv_lshlrev_b32 v9, 4, v9')
    a('v_mul_u32_u24 v4, 2688, v6\nv_add3_u32 v4, v4, v8, v9')
    a(f'v_lshlrev_b32 v15, 4, v{vLANE}')
    a('s_waitcnt lgkmcnt(0)')
    a(f's_load_dwordx2 s[{sE}:{sE+1}], s[36:37], 0')
    srd(a, SRD_X, 16, 1835008); srd(a, SRD_QKV, 18, 1204224); srd(a, SRD_PHI, 20, 25088)
    a(f's_lshl_b32 s80, s{sG}, 8\ns_lshl_b32 s85, s{sRB}, 7\ns_add_u32 s80, s80, s85\ns_lshl_b32 s85, s{sW}, 4\ns_add_u32 s80, s80, s85')
    a('s_mul_i32 s80, s80, 896')
    a(f's_mul_i32 s81, s{sW}, {8 * 2688}\ns_mul_i32 s85, s{sHP}, 112\ns_add_u32 s81, s81, s85')
    a('s_mov_b32 s13, s81')
    a(f's_mul_i32 s85, s{sROLE}, 896\ns_add_u32 s81, s81, s85\ns_add_u32 s81, s81, 896')
    a(f's_lshl_b32 s83, s{sW}, 11\ns_lshl_b32 s14, s{sW}, 10\ns_add_u32 s14, s14, {L_W}')
    a(f's_mov_b32 s82, s{sCB}')
    def nextcb():
        a('s_add_u32 s82, s82, 1\ns_cmp_eq_u32 s82, 7\ns_cselect_b32 s82, 0, s82')
    def dma_w(base_s, cb_s, slot, tag):
        a(f's_mul_i32 s85, s{cb_s}, {64 * 2688}\ns_add_u32 s85, s85, s{base_s}')
        a(f's_add_u32 m0, s14, {slot * 8192}')
        a(f'buffer_load_dwordx4 v4, s[{SRD_QKV}:{SRD_QKV+3}], s85 offen lds'); vm.issue(tag)
    for blk in range(7):
        a('s_lshl_b32 s85, s82, 7\ns_add_u32 s86, s85, s80')
        a(f's_add_u32 m0, s83, {blk * 16384}')
        a(f'buffer_load_dwordx4 v2, s[{SRD_X}:{SRD_X+3}], s86 offen lds'); vm.issue(f'x{blk}')
        a(f'buffer_load_dwordx4 v3, s[{SRD_X}:{SRD_X+3}], s86 offen offset:1024 lds'); vm.issue(f'x{blk}')
        if blk < 5: dma_w(81, 82, blk, f'w{blk}')
        if blk == 5: a('s_mov_b32 s15, s82')
        nextcb()
    a(f's_and_b32 s85, s{sW}, 3\ns_lshl_b32 s85, s85, 10\ns_add_u32 m0, s85, {L_PHIW}')
    a(f's_mul_i32 s86, s{sHP}, 3136\ns_add_u32 s86, s86, s85')
    a(f'buffer_load_dwordx4 v15, s[{SRD_PHI}:{SRD_PHI+3}], s86 offen lds'); vm.issue('phi')
    a(f's_lshl_b32 s85, s{sG}, 21\ns_add_u32 s85, s85, {WS_GRP}\ns_add_u32 s{SRD_G}, s36, s85\ns_addc_u32 s{SRD_G+1}, s37, 0')
    a(f's_and_b32 s{SRD_G+1}, s{SRD_G+1}, 0xffff\ns_mov_b32 s{SRD_G+2}, 0x200000\ns_mov_b32 s{SRD_G+3}, 0x20000')
    srd(a, SRD_S, 36, 0x400000); srd(a, SRD_WO, 22, 401408); srd(a, SRD_W1, 26, 1605632)
    srd(a, SRD_W2, 30, 1605632); srd(a, SRD_B1, 28, 3584); srd(a, SRD_OUT, 32, 1835008)
    a(f's_and_b32 s85, s{sW}, 3\ns_lshl_b32 s85, s85, 12')
    a(f'v_and_b32 v5, 31, v{vLANE}')
    a(f'v_lshrrev_b32 v11, 5, v{vLANE}')
    a('v_bfe_u32 v12, v5, 1, 3\nv_xor_b32 v12, v12, v11\nv_lshlrev_b32 v12, 4, v12')
    a('v_lshl_add_u32 v6, v5, 7, v12\nv_add_u32 v6, s85, v6')
    a('v_xor_b32 v7, 32, v6\nv_xor_b32 v8, 64, v6\nv_xor_b32 v9, 96, v6')
    a(f'v_bfe_u32 v12, v{vLANE}, 2, 2\nv_lshl_add_u32 v12, v11, 3, v12\nv_lshlrev_b32 v10, 7, v12')
    a(f's_lshr_b32 s85, s{sW}, 2')
    a(f'v_bfe_u32 v12, v{vLANE}, 3, 1\nv_xor_b32 v12, s85, v12\nv_lshl_add_u32 v10, v12, 6, v10')
    a(f'v_bfe_u32 v12, v{vLANE}, 4, 1\nv_lshl_add_u32 v10, v12, 5, v10')
    a(f'v_and_b32 v12, 3, v{vLANE}\nv_lshl_add_u32 v10, v12, 3, v10')
    a(f'v_add_u32 v10, {L_W}, v10')
    a('v_mov_b32 v11, 0\nv_mov_b32 v12, 0\nv_mov_b32 v13, 0\nv_mov_b32 v14, 0x3f803f80')
    a('s_waitcnt lgkmcnt(0)')
    a(f's_add_u32 s{sE}, s{sE}, 1\ns_addc_u32 s{sE+1}, s{sE+1}, 0')
    a(f'v_mov_b32 v{vE}, s{sE}\nv_mov_b32 v{vE+1}, s{sE+1}')
    a('s_getreg_b32 s87, hwreg(HW_REG_XCC_ID, 0, 4)')
    a(f'v_mov_b32 v{vE+2}, s87\nv_mov_b32 v{vE+3}, 0')
    a(f's_cmp_lg_u32 s{sW}, 0\ns_cbranch_scc1 L_notab')
    a(f's_lshl_b32 s85, s{sG}, 5\ns_add_u32 s85, s85, s{sI}\ns_lshl_b32 s85, s85, 4\ns_add_u32 s85, s85, {WS_TAB}')
    a('s_mov_b64 exec, 1')
    a(f'buffer_store_dwordx4 v[{vE}:{vE+3}], v{vE+3}, s[{SRD_S}:{SRD_S+3}], s85 offen sc1')
    a('s_mov_b64 exec, -1')
    a('L_notab:')
    stamp(0)

    ACC, BF, AF = 16, 32, 64
    def gemm1_block(it, first, stats, issue):
        xb, slot = it % 7, it % 5
        vm.wait(a, f'w{it}')
        a('s_barrier')
        issue(it)
        if xb == 4: a('v_add_u32 v6, 0x10000, v6\nv_add_u32 v7, 0x10000, v7\nv_add_u32 v8, 0x10000, v8\nv_add_u32 v9, 0x10000, v9')
        if xb == 0 and it > 0: a('v_subrev_u32 v6, 0x10000, v6\nv_subrev_u32 v7, 0x10000, v7\nv_subrev_u32 v8, 0x10000, v8\nv_subrev_u32 v9, 0x10000, v9')
        xo = (xb % 4) * 16384
        for t in range(4):
            a(f'ds_read_b128 v[{BF+4*t}:{BF+4*t+3}], v{6+t} offset:{xo}')
            for u in range(2):
                a(f'ds_read_b64_tr_b16 v[{AF+4*t+2*u}:{AF+4*t+2*u+1}], v10 offset:{slot*8192 + t*2048 + u*512}')
        for t in range(4):
            a(f's_waitcnt lgkmcnt({9 - 3*t})')
            c = '0' if (first and t == 0) else f'v[{ACC}:{ACC+15}]'
            a(f'v_mfma_f32_32x32x16_bf16 v[{ACC}:{ACC+15}], v[{AF+4*t}:{AF+4*t+3}], v[{BF+4*t}:{BF+4*t+3}], {c}')
            for r in range(4):
                if stats:
                    a(f'v_dot2c_f32_bf16 v11, v{BF+4*t+r}, v14')
                    a(f'v_dot2c_f32_bf16 v12, v{BF+4*t+r}, v{BF+4*t+r}')
                a(f'v_dot2c_f32_bf16 v13, v{AF+4*t+r}, v14')
    def next15():
        a('s_add_u32 s15, s15, 1\ns_cmp_eq_u32 s15, 7\ns_cselect_b32 s15, 0, s15')
    def issue1(it):
        if it in (1, 2):
            dma_w(81, 15, (it + 4) % 5, f'w{it+4}'); next15()
    for it in range(7): gemm1_block(it, it == 0, True, issue1)
    stamp(1)
    def ln_finish(vs, vq, vrstd, vB, t0, t1, want_std=None):
        half_combine(vs, t0, 'v_add_f32'); half_combine(vq, t1, 'v_add_f32')
        a(f'v_mul_f32 v{vs}, 0xbb124925, v{vs}')
        a(f'v_mul_f32 v{vq}, 0x3b124925, v{vq}')
        a(f'v_fma_f32 v{vq}, -v{vs}, v{vs}, v{vq}')
        a(f'v_max_f32 v{vq}, 0, v{vq}')
        a(f'v_add_f32 v{vq}, 0x3727c5ac, v{vq}')
        a(f'v_rsq_f32 v{vrstd}, v{vq}')
        a(f'v_cvt_pk_bf16_f32 v{vB}, v{vs}, v{vs}')
        a(f'v_lshlrev_b32 v{t0}, 16, v{vB}')
        a(f'v_sub_f32 v{t0}, v{vs}, v{t0}')
        a(f'v_cvt_pk_bf16_f32 v{vB+1}, v{t0}, v{t0}')
        if want_std is None:
            a(f'v_mov_b32 v{vB+2}, 0\nv_mov_b32 v{vB+3}, 0')
        else:
            a(f'v_mul_f32 v{vq}, v{vq}, v{vrstd}')
            a(f'v_cvt_pk_bf16_f32 v{t0}, v{vq}, v{vq}')
            a(f'v_lshlrev_b32 v{t0}, 16, v{t0}')
            a(f'v_sub_f32 v{t1}, v{vq}, v{t0}')
            a(f'v_cvt_pk_bf16_f32 v{vB+2}, v{vq}, v{t1}')
            a(f'v_and_b32 v{t0}, 0xffff0000, v{vB+2}')
            a(f'v_sub_f32 v{t1}, v{t1}, v{t0}')
            a(f'v_cvt_pk_bf16_f32 v{vB+3}, v{t1}, 0')
    def cs_frag(vcs, vA, t0):
        a(f'v_cvt_pk_bf16_f32 v{t0}, v{vcs}, v{vcs}')
        a(f'v_lshlrev_b32 v{t0}, 16, v{t0}')
        a(f'v_sub_f32 v{t0}, v{vcs}, v{t0}')
        a(f'v_cvt_pk_bf16_f32 v{vA}, v{vcs}, v{t0}')
        a(f'v_mov_b32 v{vA+1}, v{vA}')
    RB1, RA1, vRSTD = 112, 116, 5
    ln_finish(11, 12, vRSTD, RB1, 120, 121)
    a(f'v_mov_b32 v{RA1+2}, 0\nv_mov_b32 v{RA1+3}, 0')
    def rank1():
        cs_frag(13, RA1, 120)
        a(f'v_mfma_f32_32x32x16_bf16 v[{ACC}:{ACC+15}], v[{RA1}:{RA1+3}], v[{RB1}:{RB1+3}], v[{ACC}:{ACC+15}]')
    rank1()
    HI = '0xffffffff00000000'
    def exec_hi(): a('s_mov_b32 exec_lo, 0')
    def exec_all(): a('s_mov_b32 exec_lo, -1')
    PH = 80
    def feature_map():
        KF, WF, EP, EM = 32, 40, 48, 64
        a(f'v_lshrrev_b32 v120, 5, v{vLANE}\nv_bfe_u32 v121, v{vLANE}, 2, 2\nv_lshl_add_u32 v120, v120, 2, v121\nv_mul_u32_u24 v120, 56, v120')
        a(f'v_bfe_u32 v121, v{vLANE}, 4, 1\nv_lshl_add_u32 v120, v121, 5, v120')
        a(f'v_and_b32 v121, 3, v{vLANE}\nv_lshl_add_u32 v120, v121, 3, v120')
        a(f's_lshr_b32 s85, s{sW}, 2\ns_mul_i32 s85, s85, 1568\ns_add_u32 s85, s85, {L_PHIW}')
        a('v_add_u32 v120, s85, v120')
        for t in range(2):
            for u in range(2):
                a(f'ds_read_b64_tr_b16 v[{WF+4*t+2*u}:{WF+4*t+2*u+1}], v120 offset:{(16*t + 8*u) * 56}')
        for r in range(8):
            a(f'v_cvt_pk_bf16_f32 v{KF+r}, v{ACC+2*r}, v{ACC+2*r+1}')
        a('s_waitcnt lgkmcnt(0)')
        exec_hi(); a(f'v_mov_b32 v{WF+6}, 0\nv_mov_b32 v{WF+7}, 0'); exec_all()
        a(f'v_mfma_f32_32x32x16_bf16 v[{ACC}:{ACC+15}], v[{WF}:{WF+3}], v[{KF}:{KF+3}], 0')
        a(f'v_mfma_f32_32x32x16_bf16 v[{ACC}:{ACC+15}], v[{WF+4}:{WF+7}], v[{KF+4}:{KF+7}], v[{ACC}:{ACC+15}]')
        a(f'v_mul_f32 v122, {LOG2E}, v{vRSTD}')
        exec_hi()
        for r in range(12, 16): a(f'v_mov_b32 v{ACC+r}, v{ACC}')
        exec_all()
        P = ACC
        a(f'v_max3_f32 v123, v{P}, v{P+1}, v{P+2}\nv_min3_f32 v124, v{P}, v{P+1}, v{P+2}')
        for r in range(3, 15, 2):
            a(f'v_max3_f32 v123, v123, v{P+r}, v{P+r+1}\nv_min3_f32 v124, v124, v{P+r}, v{P+r+1}')
        a(f'v_max_f32 v123, v123, v{P+15}\nv_min_f32 v124, v124, v{P+15}')
        half_combine(123, 120, 'v_max_f32'); half_combine(124, 121, 'v_min_f32')
        a('v_mul_f32 v123, v122, v123\nv_mul_f32 v124, v122, v124')
        for r in range(16):
            a(f'v_fma_f32 v{EP+r}, v{P+r}, v122, -v123')
            a(f'v_fma_f32 v{EM+r}, -v{P+r}, v122, v124')
        for r in range(16):
            a(f'v_exp_f32 v{EP+r}, v{EP+r}')
            a(f'v_exp_f32 v{EM+r}, v{EM+r}')
        exec_hi()
        for r in range(12, 16): a(f'v_mov_b32 v{EP+r}, 0\nv_mov_b32 v{EM+r}, 0')
        exec_all()
        a(f'v_add_f32 v123, v{EP}, v{EP+1}\nv_add_f32 v124, v{EM}, v{EM+1}')
        a(f'v_add_f32 v125, v{EP+2}, v{EP+3}\nv_add_f32 v126, v{EM+2}, v{EM+3}')
        for r in range(4, 16, 2):
            a(f'v_add_f32 v123, v123, v{EP+r}\nv_add_f32 v124, v124, v{EM+r}')
            a(f'v_add_f32 v125, v125, v{EP+r+1}\nv_add_f32 v126, v126, v{EM+r+1}')
        a('v_add_f32 v123, v123, v125\nv_add_f32 v124, v124, v126')
        half_combine(123, 120, 'v_add_f32'); half_combine(124, 121, 'v_add_f32')
        a('v_rcp_f32 v123, v123\nv_rcp_f32 v124, v124')
        for r in range(16):
            a(f'v_mul_f32 v{EP+r}, v123, v{EP+r}\nv_mul_f32 v{EM+r}, v124, v{EM+r}')
        for r in range(8):
            a(f'v_cvt_pk_bf16_f32 v{PH+r}, v{EP+2*r}, v{EP+2*r+1}')
            a(f'v_cvt_pk_bf16_f32 v{PH+8+r}, v{EM+2*r}, v{EM+2*r+1}')
    a(f's_and_b32 s88, s{sI}, 15\ns_lshl_b32 s88, s88, 3\ns_add_u32 s88, s88, s{sW}\ns_lshl_b32 s88, s88, 12')
    def dma_rows(srd_r, voff, soff_s, pitch, nrows8, lds_base_s, lds_off, tag):
        for n in range(nrows8):
            a(f's_add_u32 m0, s{lds_base_s}, {lds_off + n * 1024}')
            a(f's_add_u32 s85, s{soff_s}, {n * 8 * pitch}')
            a(f'buffer_load_dwordx4 v{voff}, s[{srd_r}:{srd_r+3}], s85 offen lds'); vm.issue(tag)
    vO896, vO3584, vXR, vB1 = 2, 3, 244, 248
    def prefetch1():
        lskip = a.newlabel('Lnopf')
        a(f's_cmp_ge_u32 s{sI}, 28\ns_cbranch_scc1 {lskip}')
        a(f'v_lshrrev_b32 v120, 3, v{vLANE}\nv_bfe_u32 v121, v{vLANE}, 4, 1\nv_lshlrev_b32 v121, 2, v121')
        a(f'v_and_b32 v122, 7, v{vLANE}\nv_xor_b32 v121, v121, v122\nv_lshlrev_b32 v121, 4, v121')
        a(f'v_mul_u32_u24 v{vO896}, 896, v120\nv_add_u32 v{vO896}, v{vO896}, v121')
        a(f'v_mul_u32_u24 v{vO3584}, 3584, v120\nv_add_u32 v{vO3584}, v{vO3584}, v121')
        a(f's_mul_i32 s89, s{sW}, 7168')
        a(f's_mul_i32 s90, s{sW}, {56 * 896}\ns_lshl_b32 s91, s{sCB}, 7\ns_add_u32 s90, s90, s91')
        dma_rows(SRD_WO, vO896, 90, 896, 7, 89, L_WO, 'wo')
        a(f's_mul_i32 s90, s{sW}, {56 * 3584}\ns_lshl_b32 s91, s{sI}, 7\ns_add_u32 s90, s90, s91')
        dma_rows(SRD_W1, vO3584, 90, 3584, 7, 89, L_W1, 'w1')
        a(f's_lshl_b32 s90, s{sG}, 8\ns_lshl_b32 s91, s{sR64}, 6\ns_add_u32 s90, s90, s91\ns_lshr_b32 s91, s{sW}, 2\ns_lshl_b32 s91, s91, 5\ns_add_u32 s90, s90, s91')
        a(f's_mul_i32 s90, s90, 896\ns_lshl_b32 s91, s{sCB}, 7\ns_add_u32 s90, s90, s91\ns_and_b32 s91, s{sW}, 3\ns_lshl_b32 s91, s91, 5\ns_add_u32 s92, s90, s91')
        a(f'v_and_b32 v120, 31, v{vLANE}\nv_mul_u32_u24 v4, 896, v120\nv_lshrrev_b32 v121, 5, v{vLANE}\nv_lshl_add_u32 v4, v121, 4, v4')
        a(f'buffer_load_dwordx4 v[{vXR}:{vXR+3}], v4, s[{SRD_X}:{SRD_X+3}], s92 offen'); vm.issue('xr')
        a(f'v_lshlrev_b32 v120, 1, v120\ns_lshl_b32 s91, s{sI}, 7')
        a(f'buffer_load_ushort v{vB1}, v120, s[{SRD_B1}:{SRD_B1+3}], s91 offen'); vm.issue('b1')
        a(f'buffer_load_ushort v{vB1+1}, v120, s[{SRD_B1}:{SRD_B1+3}], s91 offen offset:64'); vm.issue('b1')
        a.label(lskip)
    def get_mode():
        a(f'v_and_b32 v120, 31, v{vLANE}\nv_lshlrev_b32 v120, 4, v120')
        a(f's_lshl_b32 s90, s{sG}, 9\ns_add_u32 s90, s90, {WS_TAB}')
        lr, ld, lf = a.newlabel('Lmr'), a.newlabel('Lmd'), a.newlabel('Lmf')
        a.label(lr)
        a(f'buffer_load_dwordx4 v[124:127], v120, s[{SRD_S}:{SRD_S+3}], s90 offen sc1')
        a('s_waitcnt vmcnt(0)')
        a(f'v_cmp_ne_u64 vcc, s[{sE}:{sE+1}], v[124:125]')
        a(f's_cbranch_vccz {ld}')
        spin(lr, ld)
        a.label(ld)
        a(f'v_cmp_ne_u32 vcc, s87, v126')
        a('s_nop 1')
        a(f's_or_b32 s{sMODE}, vcc_lo, vcc_hi')
        if force_slow: a(f's_mov_b32 s{sMODE}, 1')
        vm.q = []

    a(f's_cmp_lg_u32 s{sROLE}, 0\ns_cbranch_scc1 L_roleB')
    vm_split = vm.copy(); hist_split = list(a.hist)
    if stop == 1: dump(ACC, 16, 0); dump(vRSTD, 1, 1); a('s_branch L_end')
    VG = 96
    vloads = [(f'buffer_load_dwordx4 v[{VG+4*n}:{VG+4*n+3}], v15, s[{SRD_G}:{SRD_G+3}], s88 offen offset:{n*1024} sc1', VG + 4 * n) for n in range(4)]
    feature_map()
    stamp(2)
    for t, _ in vloads: a(t)
    a(f's_and_b32 s85, s{sW}, 3\ns_lshr_b32 s86, s{sW}, 2\ns_lshl_b32 s85, s85, 5\ns_lshl_b32 s86, s86, 7\ns_add_u32 s85, s85, s86')
    a(f'v_and_b32 v120, 31, v{vLANE}\nv_add_u32 v120, s85, v120\nv_lshrrev_b32 v121, 5, v{vLANE}\nv_lshlrev_b32 v121, 3, v121')
    a(f'v_mad_u32_u24 v122, v120, {PHI_P // 8}, 0\nv_lshl_add_u32 v122, v122, 3, v121')
    a(f'v_mad_u32_u24 v123, v120, {V_P // 8}, 0\nv_lshl_add_u32 v123, v123, 3, v121')
    for n in range(8):
        a(f'ds_write_b64 v122, v[{PH+2*n}:{PH+2*n+1}] offset:{L_PHI + n * 16}')
    poll_tagged(vloads, first_issued=True)
    for n in range(4):
        a(f'ds_write_b64 v123, v[{VG+4*n}:{VG+4*n+1}] offset:{L_V + n * 16}')
    a(f'v_lshrrev_b32 v120, 4, v{vLANE}\nv_bfe_u32 v121, v{vLANE}, 2, 2\nv_lshl_add_u32 v120, v120, 3, v121\nv_add_u32 v120, s86, v120')
    a(f'v_and_b32 v121, 3, v{vLANE}\nv_lshlrev_b32 v121, 3, v121')
    a(f'v_mad_u32_u24 v122, v120, {PHI_P // 8}, 0\nv_lshl_add_u32 v122, v122, 3, v121')
    a(f's_and_b32 s85, s{sW}, 3\ns_lshl_b32 s85, s85, 5\nv_add_u32 v122, s85, v122')
    a(f'v_mad_u32_u24 v123, v120, {V_P // 8}, 0\nv_lshl_add_u32 v123, v123, 3, v121')
    a('s_waitcnt lgkmcnt(0)\ns_barrier')
    stamp(3)
    KA, KB = 32, 48
    for u in range(4):
        for z in range(2):
            a(f'ds_read_b64_tr_b16 v[{KA+4*u+2*z}:{KA+4*u+2*z+1}], v122 offset:{L_PHI + (32*u + 4*z) * PHI_P}')
        for dt in range(2):
            for z in range(2):
                b = KB + 8*u + 4*dt + 2*z
                a(f'ds_read_b64_tr_b16 v[{b}:{b+1}], v123 offset:{L_V + (32*u + 4*z) * V_P + dt * 32}')
        if u == 1: a('s_waitcnt lgkmcnt(3)')
    for u in range(4):
        a(f's_waitcnt lgkmcnt({min(15, 6 * (3 - u))})')
        for dt in range(2):
            c = '0' if u == 0 else f'v[{ACC+4*dt}:{ACC+4*dt+3}]'
            a(f'v_mfma_f32_16x16x32_bf16 v[{ACC+4*dt}:{ACC+4*dt+3}], v[{KA+4*u}:{KA+4*u+3}], v[{KB+8*u+4*dt}:{KB+8*u+4*dt+3}], {c}')
    a(f's_lshl_b32 s89, s{sG}, 1\ns_add_u32 s89, s89, s{sRB}')
    a(f's_lshl_b32 s85, s{sHP}, 1\ns_lshr_b32 s86, s{sW}, 2\ns_add_u32 s85, s85, s86\ns_lshl_b32 s85, s85, 4\ns_add_u32 s85, s85, s89\ns_lshl_b32 s85, s85, 13')
    a(f's_and_b32 s86, s{sW}, 3\ns_lshl_b32 s86, s86, 11\ns_add_u32 s85, s85, s86\ns_add_u32 s85, s85, {WS_PART}')
    for dt in range(2):
        g = 24 + 4 * dt
        a(f'v_mov_b32 v{g+2}, v{vE}\nv_mov_b32 v{g+3}, v{vE+1}')
    for dt in range(2):
        g = 24 + 4 * dt
        a(f'v_cvt_pk_bf16_f32 v{g}, v{ACC+4*dt}, v{ACC+4*dt+1}\nv_cvt_pk_bf16_f32 v{g+1}, v{ACC+4*dt+2}, v{ACC+4*dt+3}')
        a(f'buffer_store_dwordx4 v[{g}:{g+3}], v15, s[{SRD_S}:{SRD_S+3}], s85 offen offset:{dt*1024} sc1')
    stamp(4)
    a(f's_cmp_lg_u32 s{sW}, 0\ns_cbranch_scc1 L_noreduce')
    a(f's_lshl_b32 s85, s{sHP}, 1\ns_lshr_b32 s86, s89, 3\ns_add_u32 s85, s85, s86')
    a(f's_and_b32 s86, s89, 7\ns_lshl_b32 s86, s86, 10')
    a(f's_lshl_b32 s90, s85, 13\ns_add_u32 s90, s90, s86\ns_add_u32 s90, s90, {WS_FIN}')
    a(f's_lshl_b32 s85, s85, 17\ns_add_u32 s85, s85, s86\ns_add_u32 s85, s85, {WS_PART}')
    a('v_add_u32 v120, s85, v15')
    RG = 128
    pl = []
    for p in range(16):
        a(f'v_add_u32 v{96+p}, {p * 8192}, v120')
        pl.append((f'buffer_load_dwordx4 v[{RG+4*p}:{RG+4*p+3}], v{96+p}, s[{SRD_S}:{SRD_S+3}], 0 offen sc1', RG + 4 * p))
    poll_tagged(pl)
    for p in range(16):
        g = RG + 4 * p
        a(f'v_lshlrev_b32 v{g+2}, 16, v{g+1}\nv_and_b32 v{g+3}, 0xffff0000, v{g+1}')
        a(f'v_and_b32 v{g+1}, 0xffff0000, v{g}\nv_lshlrev_b32 v{g}, 16, v{g}')
    for st in (8, 4, 2, 1):
        for p in range(st):
            g, h_ = RG + 4 * p, RG + 4 * (p + st)
            a(f'v_pk_add_f32 v[{g}:{g+1}], v[{g}:{g+1}], v[{h_}:{h_+1}]\nv_pk_add_f32 v[{g+2}:{g+3}], v[{g+2}:{g+3}], v[{h_+2}:{h_+3}]')
    a(f'v_cvt_pk_bf16_f32 v24, v{RG}, v{RG+1}\nv_cvt_pk_bf16_f32 v25, v{RG+2}, v{RG+3}')
    a(f'buffer_store_dwordx4 v[24:27], v15, s[{SRD_S}:{SRD_S+3}], s90 offen sc1')
    a('L_noreduce:')
    a.fence()
    stamp(5)
    a('s_barrier')
    vm.q = []
    prefetch1()
    get_mode()
    a('s_branch L_stage3')

    a.label('L_roleB')
    vm.q = list(vm_split.q); a.hist = list(hist_split)
    a.fence()
    if stop == 1: dump(ACC, 16, 0); dump(vRSTD, 1, 1); a('s_branch L_end')
    for n in range(4):
        a(f'v_mov_b32 v{VG+4*n+2}, v{vE}\nv_mov_b32 v{VG+4*n+3}, v{vE+1}')
    for r in range(16): a(f'v_mul_f32 v{ACC+r}, v{vRSTD}, v{ACC+r}')
    exec_hi(); a(f'v_mov_b32 v{ACC+12}, 1.0\nv_mov_b32 v{ACC+13}, 0\nv_mov_b32 v{ACC+14}, 0\nv_mov_b32 v{ACC+15}, 0'); exec_all()
    for n in range(4):
        a(f'v_cvt_pk_bf16_f32 v{VG+4*n}, v{ACC+4*n}, v{ACC+4*n+1}\nv_cvt_pk_bf16_f32 v{VG+4*n+1}, v{ACC+4*n+2}, v{ACC+4*n+3}')
        a(f'buffer_store_dwordx4 v[{VG+4*n}:{VG+4*n+3}], v15, s[{SRD_G}:{SRD_G+3}], s88 offen offset:{n*1024} sc1'); vm.issue('vst')
    stamp(2)
    for it in range(7, 11):
        dma_w(13, 15, it % 5, f'w{it}'); next15()
    a('v_mov_b32 v13, 0')
    def issue2(it):
        if it + 4 < 14:
            dma_w(13, 15, (it + 4) % 5, f'w{it+4}'); next15()
    for it in range(7, 14): gemm1_block(it, it == 7, False, issue2)
    rank1()
    stamp(3)
    a('s_barrier')
    prefetch1()
    feature_map()
    stamp(4)
    get_mode()
    FG = 128
    a(f'v_bfe_u32 v120, v{vLANE}, 4, 1\nv_lshlrev_b32 v120, 10, v120\nv_lshrrev_b32 v121, 5, v{vLANE}\nv_lshl_add_u32 v120, v121, 8, v120')
    a(f'v_and_b32 v121, 15, v{vLANE}\nv_lshl_add_u32 v120, v121, 4, v120\nv_add_u32 v121, 4096, v120')
    a(f's_lshl_b32 s89, s{sHP}, 1\ns_lshr_b32 s86, s{sW}, 2\ns_add_u32 s89, s89, s86')
    a(f's_lshl_b32 s90, s89, 13\ns_add_u32 s90, s90, {WS_FIN}')
    fl = []
    for t in range(4):
        for y in range(2):
            g = FG + 8 * t + 4 * y
            fl.append((f'buffer_load_dwordx4 v[{g}:{g+3}], v{120 + (t >> 1)}, s[{SRD_S}:{SRD_S+3}], s90 offen offset:{(t & 1) * 2048 + y * 512} sc1', g))
    poll_tagged(fl)
    stamp(5)
    for t in range(4):
        g = FG + 8 * t
        a(f'v_mov_b32 v{g+2}, v{g+4}\nv_mov_b32 v{g+3}, v{g+5}')
    for t in range(4):
        g = FG + 8 * t
        c = '0' if t == 0 else f'v[{ACC}:{ACC+15}]'
        a(f'v_mfma_f32_32x32x16_bf16 v[{ACC}:{ACC+15}], v[{g}:{g+3}], v[{PH+4*t}:{PH+4*t+3}], {c}')
    a(f's_lshl_b32 s85, s{sRB}, 2\ns_and_b32 s86, s{sW}, 3\ns_add_u32 s85, s85, s86\ns_lshl_b32 s85, s85, 4\ns_add_u32 s85, s85, s89')
    a(f's_lshl_b32 s90, s85, 11\ns_add_u32 s90, s90, {G_O}\ns_lshl_b32 s91, s85, 3\ns_add_u32 s91, s91, {G_FO}')
    a(f'v_mov_b32 v120, v{ACC+12}\nv_mov_b32 v121, v{ACC+12}')
    a('v_permlane32_swap_b32 v120, v121')
    a('v_add_f32 v121, 0x358637bd, v121\nv_rcp_f32 v121, v121')
    for r in range(16): a(f'v_mul_f32 v{ACC+r}, v121, v{ACC+r}')
    for r in range(8): a(f'v_cvt_pk_bf16_f32 v{32+r}, v{ACC+2*r}, v{ACC+2*r+1}')
    exec_hi(); a('v_mov_b32 v38, 0\nv_mov_b32 v39, 0'); exec_all()
    publish([f'buffer_store_dwordx4 v[{32+4*c}:{35+4*c}], v15, s[{SRD_G}:{SRD_G+3}], s90 offen offset:{c*1024}' for c in range(2)], 91, vE + 3)
    a(f's_cmp_ge_u32 s{sI}, 28\ns_cbranch_scc1 L_fin')

    a.label('L_stage3')
    a.fence()
    if stop == 2: a('s_branch L_fin')
    a('s_waitcnt vmcnt(0)\ns_barrier'); vm.q = []
    stamp(6)
    vT0, vT1 = 6, 7
    a(f'v_lshrrev_b32 v120, 5, v{vLANE}\nv_bfe_u32 v121, v{vLANE}, 2, 2\nv_lshl_add_u32 v120, v120, 2, v121\nv_lshlrev_b32 v{vT0}, 7, v120')
    a(f'v_bfe_u32 v121, v{vLANE}, 3, 1\nv_lshl_add_u32 v{vT0}, v121, 6, v{vT0}')
    a(f'v_bfe_u32 v121, v{vLANE}, 4, 1\nv_lshl_add_u32 v{vT0}, v121, 5, v{vT0}')
    a(f'v_and_b32 v121, 3, v{vLANE}\nv_lshl_add_u32 v{vT0}, v121, 3, v{vT0}')
    a(f'v_xor_b32 v{vT1}, 64, v{vT0}')
    a(f's_and_b32 s93, s{sW}, 3\ns_lshl_b32 s85, s93, 5')
    a(f'v_xor_b32 v8, s85, v{vT0}\nv_xor_b32 v9, s85, v{vT1}')
    a(f's_mul_i32 s85, s93, {112 * 128}\ns_add_u32 s85, s85, {L_WO}')
    a('v_add_u32 v120, s85, v8\nv_add_u32 v121, s85, v9')
    WA, OB, A3 = 160, 128, 16
    cnt = 0
    for hd in range(4):
        for c in range(2):
            for nt in range(2):
                for u in range(2):
                    b = WA + ((hd * 2 + c) * 2 + nt) * 4 + 2 * u
                    a(f'ds_read_b64_tr_b16 v[{b}:{b+1}], v{120+nt} offset:{(28*hd + 16*c + 8*u) * 128}')
                    cnt += 1
                    if cnt % 12 == 0: a('s_waitcnt lgkmcnt(2)')
    a(f's_lshl_b32 s94, s{sR64}, 1\ns_lshr_b32 s85, s{sW}, 2\ns_add_u32 s94, s94, s85')
    a('s_lshl_b32 s85, s94, 4\ns_lshl_b32 s86, s93, 2\ns_add_u32 s85, s85, s86')
    a(f's_lshl_b32 s90, s85, 11\ns_add_u32 s90, s90, {G_O}\ns_lshl_b32 s91, s85, 3\ns_add_u32 s91, s91, {G_FO}')
    a(f'v_and_b32 v122, 3, v{vLANE}\nv_lshlrev_b32 v122, 3, v122\nv_add_u32 v123, 4096, v15')
    a(f'v_permlane32_swap_b32 v{vXR}, v{vXR+2}\nv_permlane32_swap_b32 v{vXR+1}, v{vXR+3}')
    for r in range(4):
        a(f'v_lshlrev_b32 v{48+2*r}, 16, v{vXR+r}\nv_and_b32 v{49+2*r}, 0xffff0000, v{vXR+r}')
    a('s_waitcnt lgkmcnt(0)')
    exec_hi()
    for nt in range(2):
        b = WA + (7 * 2 + nt) * 4 + 2
        a(f'v_mov_b32 v{b}, 0\nv_mov_b32 v{b+1}, 0')
    exec_all()
    poll_flags(122, 's91', 124)
    stamp(7)
    for n in range(8):
        a(f'buffer_load_dwordx4 v[{OB+4*n}:{OB+4*n+3}], v{15 if n < 4 else 123}, s[{SRD_G}:{SRD_G+3}], s90 offen offset:{(n & 3) * 1024} sc1')
    for n in range(8):
        a(f's_waitcnt vmcnt({7 - n})')
        for nt in range(2):
            c = '0' if n == 0 else f'v[{A3+16*nt}:{A3+16*nt+15}]'
            b = WA + (n * 2 + nt) * 4
            a(f'v_mfma_f32_32x32x16_bf16 v[{A3+16*nt}:{A3+16*nt+15}], v[{b}:{b+3}], v[{OB+4*n}:{OB+4*n+3}], {c}')
    def red_addr(nsrc, base):
        per = nsrc * 2048
        for q in range(1, nsrc + 1):
            a(f's_xor_b32 s85, s{sW}, {q}\ns_mul_i32 s85, s85, {per}\ns_add_u32 s85, s85, {base + (q - 1) * 2048}')
            a(f'v_add_u32 v{119+q}, s85, v15')
        a(f's_mul_i32 s85, s{sW}, {per}\ns_add_u32 s85, s85, {base}\nv_add_u32 v119, s85, v15')
    red_addr(3, L_SCR)
    for q in (1, 2, 3):
        for z in range(2):
            b = A3 + 8 * q + 4 * z
            a(f'ds_write_b128 v{119+q}, v[{b}:{b+3}] offset:{z*1024}')
    for r in range(0, 8, 2):
        a(f'v_pk_add_f32 v[{A3+r}:{A3+r+1}], v[{A3+r}:{A3+r+1}], v[{48+r}:{49+r}]')
    a('s_waitcnt lgkmcnt(0)\ns_barrier')
    for n in range(6):
        a(f'ds_read_b128 v[{OB+4*n}:{OB+4*n+3}], v119 offset:{n*1024}')
    a(f's_lshl_b32 s85, s{sCB}, 2\ns_add_u32 s85, s85, s93')
    a(f's_mul_i32 s90, s94, 28\ns_add_u32 s90, s90, s85\ns_lshl_b32 s90, s90, 10\ns_add_u32 s90, s90, {G_H}')
    a(f's_lshl_b32 s91, s94, 5\ns_add_u32 s91, s91, s85\ns_lshl_b32 s91, s91, 3\ns_add_u32 s91, s91, {G_FH}')
    for n in range(6):
        a(f's_waitcnt lgkmcnt({5 - n})')
        z = n & 1
        for r in range(0, 4, 2):
            a(f'v_pk_add_f32 v[{A3+4*z+r}:{A3+4*z+r+1}], v[{A3+4*z+r}:{A3+4*z+r+1}], v[{OB+4*n+r}:{OB+4*n+r+1}]')
    for r in range(4): a(f'v_cvt_pk_bf16_f32 v{vXR+r}, v{A3+2*r}, v{A3+2*r+1}')
    publish([f'buffer_store_dwordx4 v[{vXR}:{vXR+3}], v15, s[{SRD_G}:{SRD_G+3}], s90 offen'], 91, vE + 3)
    stamp(8)
    if stop == 3: a('s_branch L_fin')
    a('s_barrier')
    a(f's_mul_i32 s95, s{sW}, {224 * 896}\ns_lshl_b32 s85, s{sCB}, 7\ns_add_u32 s95, s95, s85')
    a(f's_mul_i32 s96, s{sW}, 12288')
    dma_rows(SRD_W2, vO896, 95, 896, 12, 96, L_WO, 'w2a')

    HB, A4, AS = 128, 16, 48
    a(f's_lshl_b32 s91, s{sW}, 8\ns_add_u32 s91, s91, {G_FH}')
    a(f'v_min_u32 v122, 27, v{vLANE}\nv_lshlrev_b32 v122, 3, v122')
    a(f's_mul_i32 s90, s{sW}, {28 * 1024}\ns_add_u32 s90, s90, {G_H}')
    a('v_mov_b32 v10, 0\nv_mov_b32 v11, 0\nv_mov_b32 v12, 0\nv_mov_b32 v13, 0')
    poll_flags(122, 's91', 124)
    stamp(9)
    for t in range(28):
        if t % 4 == 0 and t > 0: a('s_add_u32 s90, s90, 4096')
        a(f'buffer_load_dwordx4 v[{HB+4*t}:{HB+4*t+3}], v15, s[{SRD_G}:{SRD_G+3}], s90 offen offset:{(t & 3) * 1024} sc1')
    def a4_read(t):
        s = AS + (t % 4) * 8
        for nt in range(2):
            for u in range(2):
                a(f'ds_read_b64_tr_b16 v[{s+4*nt+2*u}:{s+4*nt+2*u+1}], v{vT0+nt} offset:{L_W1 + t*2048 + u*1024}')
    for t in range(3): a4_read(t)
    for t in range(28):
        a(f's_waitcnt vmcnt({27 - t}) lgkmcnt({min(8, 4 * (27 - t))})')
        if t + 3 < 28: a4_read(t + 3)
        s = AS + (t % 4) * 8
        for nt in range(2):
            c = '0' if t == 0 else f'v[{A4+16*nt}:{A4+16*nt+15}]'
            a(f'v_mfma_f32_32x32x16_bf16 v[{A4+16*nt}:{A4+16*nt+15}], v[{s+4*nt}:{s+4*nt+3}], v[{HB+4*t}:{HB+4*t+3}], {c}')
            for r in range(4):
                a(f'v_dot2c_f32_bf16 v{12+nt}, v{s+4*nt+r}, v14')
                if nt == 0: a(f'v_dot2c_f32_bf16 v10, v{HB+4*t+r}, v14')
                else: a(f'v_dot2c_f32_bf16 v11, v{HB+4*t+r}, v{HB+4*t+r}')
    stamp(10)
    ln_finish(10, 11, vRSTD, RB1, 120, 121, want_std=True)
    for nt in range(2):
        cs_frag(12 + nt, RA1, 120)
        a(f'v_lshl_or_b32 v{RA1+2}, v{vB1+nt}, 16, v{vB1+nt}\nv_mov_b32 v{RA1+3}, v{vB1+nt}')
        exec_hi(); a(f'v_mov_b32 v{RA1+2}, 0\nv_mov_b32 v{RA1+3}, 0'); exec_all()
        a(f'v_mfma_f32_32x32x16_bf16 v[{A4+16*nt}:{A4+16*nt+15}], v[{RA1}:{RA1+3}], v[{RB1}:{RB1+3}], v[{A4+16*nt}:{A4+16*nt+15}]')
        a('s_nop 3')
    W2R = 192
    a(f's_add_u32 s85, s96, {L_WO}\nv_add_u32 v120, s85, v8\nv_add_u32 v121, s85, v9')
    for t in range(6):
        for nt in range(2):
            for u in range(2):
                b = W2R + (t * 2 + nt) * 4 + 2 * u
                a(f'ds_read_b64_tr_b16 v[{b}:{b+1}], v{120+nt} offset:{t*2048 + u*1024}')
        if t == 2: a('s_waitcnt lgkmcnt(2)')
    a('s_waitcnt lgkmcnt(0)\ns_barrier')
    a(f's_lshl_b32 s96, s{sW}, 14\ns_add_u32 s95, s95, {96 * 896}')
    dma_rows(SRD_W2, vO896, 95, 896, 16, 96, 0, 'w2b')
    a(f'v_mul_f32 v122, {LOG2E}, v{vRSTD}')
    E4, PK = 48, 80
    for r in range(32):
        a(f'v_mul_f32 v{E4+r}, v122, v{A4+r}')
    for r in range(32):
        a(f'v_exp_f32 v{E4+r}, v{E4+r}')
        a(f'v_mul_f32 v{A4+r}, v{vRSTD}, v{A4+r}')
    for r in range(32):
        a(f'v_add_f32 v{96+(r&7)}, 2.0, v{E4+r}')
        a(f'v_fma_f32 v{E4+r}, v{E4+r}, v{96+(r&7)}, 2.0')
    for r in range(32):
        a(f'v_rcp_f32 v{E4+r}, v{E4+r}')
    for r in range(32):
        a(f'v_fma_f32 v{E4+r}, v{E4+r}, -2.0, 1.0')
    for r in range(32):
        a(f'v_mul_f32 v{A4+r}, v{A4+r}, v{E4+r}')
    for r in range(16):
        a(f'v_cvt_pk_bf16_f32 v{PK+r}, v{A4+2*r}, v{A4+2*r+1}')
    a(f's_mul_i32 s90, s{sW}, 112\ns_lshl_b32 s85, s{sI}, 2\ns_add_u32 s90, s90, s85\ns_lshl_b32 s90, s90, 10\ns_add_u32 s90, s90, {G_ACT}')
    a(f's_lshl_b32 s91, s{sW}, 5\ns_add_u32 s91, s91, s{sI}\ns_lshl_b32 s91, s91, 3\ns_add_u32 s91, s91, {G_FA}')
    stamp(11)
    publish([f'buffer_store_dwordx4 v[{PK+4*n}:{PK+4*n+3}], v15, s[{SRD_G}:{SRD_G+3}], s90 offen offset:{n*1024}' for n in range(4)], 91, vE + 3)
    stamp(12)
    if stop == 4: a('s_branch L_fin')

    A5, AS5, AB = 16, 80, 96
    a(f's_mul_i32 s85, s{sW}, 14\ns_lshr_b32 s86, s85, 2\ns_lshl_b32 s91, s{sR64}, 6\ns_add_u32 s91, s91, s86\ns_lshl_b32 s91, s91, 3\ns_add_u32 s91, s91, {G_FA}')
    a(f'v_and_b32 v10, 3, v{vLANE}\nv_bfe_u32 v11, v{vLANE}, 2, 1\nv_lshl_add_u32 v10, v11, 5, v10\nv_lshlrev_b32 v10, 3, v10')
    a(f's_mul_i32 s90, s94, 112\ns_add_u32 s90, s90, s85\ns_lshl_b32 s90, s90, 10\ns_add_u32 s90, s90, {G_ACT}')
    a(f's_xor_b32 s89, s94, 1\ns_mul_i32 s89, s89, 112\ns_add_u32 s89, s89, s85\ns_lshl_b32 s89, s89, 10\ns_add_u32 s89, s89, {G_ACT}')
    a('v_add_u32 v12, s96, v8\nv_add_u32 v13, s96, v9')
    poll_flags(10, 's91', 240)
    stamp(13)
    def b5_load(t):
        for rt in range(2):
            b = AB + ((t * 2 + rt) % 24) * 4
            a(f's_add_u32 s85, s{90 - rt}, {(t >> 2) * 4096}')
            a(f'buffer_load_dwordx4 v[{b}:{b+3}], v15, s[{SRD_G}:{SRD_G+3}], s85 offen offset:{(t & 3) * 1024} sc1'); vm.issue(f'b{t}')
    def a5_read(t):
        s = AS5 + (t % 2) * 8
        for nt in range(2):
            for u in range(2):
                a(f'ds_read_b64_tr_b16 v[{s+4*nt+2*u}:{s+4*nt+2*u+1}], v{12+nt} offset:{(t-6)*2048 + u*1024}')
    for t in range(12): b5_load(t)
    for t in range(14):
        if t == 4: a5_read(6)
        vm.wait(a, f'b{t}')
        if t >= 6: a('s_waitcnt lgkmcnt(0)')
        if t >= 6 and t + 1 < 14: a5_read(t + 1)
        for rt in range(2):
            for nt in range(2):
                acc = A5 + (rt * 2 + nt) * 16
                c = '0' if t == 0 else f'v[{acc}:{acc+15}]'
                s = (W2R + (t * 2 + nt) * 4) if t < 6 else (AS5 + (t % 2) * 8 + 4 * nt)
                b = AB + ((t * 2 + rt) % 24) * 4
                a(f'v_mfma_f32_32x32x16_bf16 v[{acc}:{acc+15}], v[{s}:{s+3}], v[{b}:{b+3}], {c}')
        if t < 2: b5_load(12 + t)
    stamp(14)
    red_addr(7, 0)
    a('s_barrier')
    for q in range(1, 8):
        for z in range(2):
            b = A5 + 8 * q + 4 * z
            a(f'ds_write_b128 v{119+q}, v[{b}:{b+3}] offset:{z*1024}')
    for r in range(4):
        a(f'v_lshlrev_b32 v{80+2*r}, 16, v{vXR+r}\nv_and_b32 v{81+2*r}, 0xffff0000, v{vXR+r}')
    for r in range(0, 8, 2):
        a(f'v_pk_add_f32 v[{A5+r}:{A5+r+1}], v[{A5+r}:{A5+r+1}], v[{80+r}:{81+r}]')
    a('s_waitcnt lgkmcnt(0)\ns_barrier')
    RD = 128
    for n in range(14):
        a(f'ds_read_b128 v[{RD+4*n}:{RD+4*n+3}], v119 offset:{n*1024}')
    for n in range(14):
        a(f's_waitcnt lgkmcnt({13 - n})')
        z = n & 1
        for r in range(0, 4, 2):
            a(f'v_pk_add_f32 v[{A5+4*z+r}:{A5+4*z+r+1}], v[{A5+4*z+r}:{A5+4*z+r+1}], v[{RD+4*n+r}:{RD+4*n+r+1}]')
    for r in range(4): a(f'v_cvt_pk_bf16_f32 v{80+r}, v{A5+2*r}, v{A5+2*r+1}')
    a('v_permlane32_swap_b32 v80, v82\nv_permlane32_swap_b32 v81, v83')
    a(f'buffer_store_dwordx4 v[80:83], v4, s[{SRD_OUT}:{SRD_OUT+3}], s92 offen')
    stamp(15)
    a(f's_or_b32 s85, s2, s{sW}\ns_cmp_lg_u32 s85, 0\ns_cbranch_scc1 L_fin')
    a('s_mov_b64 exec, 1')
    a(f'buffer_store_dwordx2 v[{vE}:{vE+1}], v{vE+3}, s[{SRD_S}:{SRD_S+3}], 0 offen sc1')
    a('s_mov_b64 exec, -1')
    a.label('L_fin')
    if prof:
        a.fence()
        a(f'v_writelane_b32 v{vST}, s{sTMO}, 62')
        a(f'v_writelane_b32 v{vST}, s{sMODE}, 63')
        a(f's_add_u32 s80, s36, {WS_DBG + 0x6000000}\ns_addc_u32 s81, s37, 0')
        a(f's_lshl_b32 s82, s2, 3\ns_add_u32 s82, s82, s{sW}\ns_lshl_b32 s82, s82, 8')
        a(f'v_lshl_add_u32 v249, v{vLANE}, 2, s82')
        a(f'global_store_dword v249, v{vST}, s[80:81]')
    a.label('L_end')
    a('s_endpgm')
    hdr = open('sequential_preLN__linear_kernel_hedgehog__dense_activation_mish__prompt.s.ref').read().split('\n')
    hdr = [l for l in hdr if l.startswith(';') and '@launch' not in l]
    s = '\n'.join(hdr) + '\n; @launch grid=(256,1,1) block=(512,1,1) lds=163840\n'
    s += '.amdgcn_target "amdgcn-amd-amdhsa--gfx950"\n.text\n'
    s += f'.globl {KNAME}\n.p2align 8\n.type {KNAME},@function\n{KNAME}:\n' + a.text() + '\n'
    s += f'''.section .rodata,"a"
.p2align 6
.amdhsa_kernel {KNAME}
  .amdhsa_next_free_vgpr 256
  .amdhsa_next_free_sgpr 102
  .amdhsa_accum_offset 256
  .amdhsa_group_segment_fixed_size 0
  .amdhsa_kernarg_size 88
  .amdhsa_user_sgpr_count 2
  .amdhsa_user_sgpr_kernarg_segment_ptr 1
  .amdhsa_system_sgpr_workgroup_id_x 1
.end_amdhsa_kernel
'''
    return s

if __name__ == '__main__':
    import argparse
    ap = argparse.ArgumentParser()
    ap.add_argument('-o', default='k.s'); ap.add_argument('--prof', action='store_true'); ap.add_argument('--stop', type=int, default=99)
    ap.add_argument('--slow', action='store_true')
    args = ap.parse_args()
    open(args.o, 'w').write(gen(args.prof, args.stop, args.slow))
```

```python
import sys
from asmdsl import *

KNAME = "sequential_preLN__linear_kernel_hedgehog__dense_activation_mish__prompt_kernel"

WS_TAB, WS_FIN, WS_PART, WS_GRP = 0x1000, 0x20000, 0x200000, 0x400000
G_V, G_O, G_H, G_ACT = 0, 0x80000, 0xC0000, 0x100000
G_FO, G_FH, G_FA, G_FV, G_ST1, G_ST2 = 0xF8000, 0xF9000, 0xFA000, 0xFB000, 0xFC000, 0xFD000
WS_DBG = 0x2000000
L_W = 114688
L_PHIW = 155648
L_PHI, PHI_P = 0, 136
L_V, V_P = 34816, 72
L_W1, L_WO, L_SCR = 0, 57344, 114688
L_CS = 57344
L_X1 = 65536
sW, sG, sI, sROLE, sRB, sHP, sCB, sR64 = 3, 4, 5, 6, 7, 8, 9, 10
sMODE, sTMO = 11, 12
sTI, sSPEC, sXCC, sKQ, sRT, sXO = 26, 100, 28, 29, 30, 31
sE = 38
SRD_X, SRD_QKV, SRD_G, SRD_S, SRD_PHI, SRD_WO, SRD_W1, SRD_W2, SRD_B1, SRD_OUT = 40, 44, 48, 52, 56, 60, 64, 68, 72, 76
LOG2E = 0x3fb8aa3b
TMO = 40000

class VM:
    def __init__(s): s.q = []
    def issue(s, tag): s.q.append(tag)
    def wait(s, a, tag, extra=''):
        idx = max(i for i, t in enumerate(s.q) if t == tag)
        n = len(s.q) - 1 - idx
        assert n < 64
        a(f's_waitcnt vmcnt({n})' + extra); s.q = s.q[idx + 1:]

def S(r): return f's[{r}:{r+3}]'
def srd(a, r, lo, size):
    a(f's_mov_b32 s{r}, s{lo}\ns_and_b32 s{r+1}, s{lo+1}, 0xffff\ns_mov_b32 s{r+2}, {size}\ns_mov_b32 s{r+3}, 0x20000')

def gen(prof=False, stop=99, force_slow=False, opt=None):
    opt = opt or {}
    a = Asm()
    vm = VM()
    vLANE, vL16, vE, vST = 1, 15, 250, 255
    vZ = vE + 3
    def stamp(idx):
        if not prof: return
        a('s_memrealtime s[98:99]\ns_waitcnt lgkmcnt(0)')
        a(f'v_writelane_b32 v{vST}, s98, {idx}')
    def spin(lbl_retry, lbl_done):
        a(f's_sub_u32 s{sTMO}, s{sTMO}, 1')
        a(f's_cbranch_scc1 {lbl_done}')
        a('s_sleep 1')
        a(f's_branch {lbl_retry}')
    def poll(loads, first_tag=None):
        lr, ld, lc = a.newlabel('Lpt'), a.newlabel('Lpd'), a.newlabel('Lpc')
        if first_tag:
            vm.wait(a, first_tag); a(f's_branch {lc}')
        a.label(lr)
        for t, _ in loads: a(t)
        a('s_waitcnt vmcnt(0)')
        a.label(lc)
        if len(loads) == 1:
            a(f'v_cmp_ne_u64 vcc, s[{sE}:{sE+1}], v[{loads[0][1]}:{loads[0][1]+1}]')
            a(f's_cbranch_vccz {ld}')
        else:
            for n, (_, vb) in enumerate(loads):
                p = 16 if n == 0 else 18 + 2 * (n & 3)
                a(f'v_cmp_ne_u64 s[{p}:{p+1}], s[{sE}:{sE+1}], v[{vb}:{vb+1}]')
                if n >= 2:
                    q = 18 + 2 * ((n - 1) & 3); a(f's_or_b64 s[16:17], s[16:17], s[{q}:{q+1}]')
            q = 18 + 2 * ((len(loads) - 1) & 3)
            a(f's_or_b64 s[16:17], s[16:17], s[{q}:{q+1}]')
            a(f's_cbranch_scc0 {ld}')
        spin(lr, ld)
        a.label(ld)
        if not first_tag: vm.q = []
    def flagload(voff, soff, vt):
        return (f'buffer_load_dwordx2 v[{vt}:{vt+1}], v{voff}, {S(SRD_G)}, {soff} offen sc1', vt)
    def publish(stores, flag_soff_reg):
        ls, le = a.newlabel('Lslow'), a.newlabel('Lpe')
        a(f's_cmp_lg_u32 s{sMODE}, 0')
        a(f's_cbranch_scc1 {ls}')
        for sc in ('', ' sc1'):
            for t in stores: a(t + sc)
            if flag_soff_reg is not None:
                a('s_waitcnt vmcnt(0)')
                a('s_mov_b64 exec, 1')
                a(f'buffer_store_dwordx2 v[{vE}:{vE+1}], v{vZ}, {S(SRD_G)}, s{flag_soff_reg} offen' + sc)
                a('s_mov_b64 exec, -1')
            if sc == '':
                a(f's_branch {le}'); a.label(ls)
        a.label(le)
        if flag_soff_reg is not None: vm.q = ['flag']
        else:
            for t in stores: vm.issue('st')
    def half_combine(v, t, op):
        a(f'v_mov_b32 v{t}, v{v}')
        a(f'v_permlane32_swap_b32 v{t}, v{v}')
        a(f'{op} v{v}, v{t}, v{v}')
    def exec_hi(): a('s_mov_b32 exec_lo, 0')
    def exec_all(): a('s_mov_b32 exec_lo, -1')
    def dump(vb, n, slot):
        a('s_waitcnt vmcnt(0) lgkmcnt(0)')
        a.fence()
        a(f's_add_u32 s80, s36, {WS_DBG + slot * 0x2000000}\ns_addc_u32 s81, s37, 0')
        a(f's_lshl_b32 s82, s2, 3\ns_add_u32 s82, s82, s{sW}\ns_mul_i32 s82, s82, {64 * 256}')
        a(f'v_lshl_add_u32 v249, v{vLANE}, 2, s82')
        for r in range(n):
            a(f'global_store_dword v249, v{vb + r}, s[80:81] offset:{(r % 16) * 256}')
            if r % 16 == 15: a('v_add_u32 v249, 4096, v249')
        a('s_waitcnt vmcnt(0)')
        vm.q = []
    def stats_from_sums(vs, vq):
        a(f'v_mul_f32 v{vs}, 0xbb124925, v{vs}')
        a(f'v_mul_f32 v{vq}, 0x3b124925, v{vq}')
        a(f'v_fma_f32 v{vq}, -v{vs}, v{vs}, v{vq}')
        a(f'v_max_f32 v{vq}, 0, v{vq}')
        a(f'v_add_f32 v{vq}, 0x3727c5ac, v{vq}')
        a(f'v_rsq_f32 v{vq}, v{vq}')

    a('s_cmp_ge_u32 s2, 256')
    a('s_cbranch_scc1 L_end')
    a('s_load_dwordx16 s[16:31], s[0:1], 0')
    a('s_load_dwordx4 s[32:35], s[0:1], 64')
    a('s_load_dwordx2 s[36:37], s[0:1], 80')
    if prof:
        a(f'v_mov_b32 v{vST}, 0\ns_memrealtime s[96:97]')
    a(f's_lshr_b32 s{sI}, s2, 3')
    a('s_getpc_b64 s[80:81]')
    a('L_pc:')
    a('v_lshrrev_b32 v5, 6, v0')
    a(f'v_lshl_add_u32 v6, s{sI}, 3, v5')
    a('v_lshlrev_b32 v6, 7, v6')
    a('v_min_u32 v6, L_code_end-L_pc-4, v6')
    a('global_load_dword v240, v6, s[80:81]'); vm.issue('code')
    a(f'v_and_b32 v{vLANE}, 63, v0')
    a(f'v_readfirstlane_b32 s{sW}, v5')
    a(f's_and_b32 s{sG}, s2, 7\ns_lshr_b32 s{sROLE}, s{sI}, 4')
    a(f's_bfe_u32 s{sRB}, s{sI}, 0x10003\ns_and_b32 s{sHP}, s{sI}, 7')
    a(f's_mul_i32 s82, s{sI}, 37\ns_lshr_b32 s82, s82, 8\ns_mul_i32 s82, s82, 7\ns_sub_u32 s82, s{sI}, s82')
    a(f'v_lshrrev_b32 v6, 3, v{vLANE}')
    a(f'v_lshrrev_b32 v7, 4, v{vLANE}')
    a(f'v_and_b32 v8, 7, v{vLANE}')
    a('v_xor_b32 v8, v8, v7\nv_lshlrev_b32 v8, 4, v8')
    a('v_mul_u32_u24 v2, 896, v6\nv_add_u32 v2, v2, v8')
    a('v_xor_b32 v3, 64, v2\nv_add_u32 v3, 6144, v3')
    a(f'v_lshrrev_b32 v8, 2, v{vLANE}\nv_xor_b32 v8, v8, v7\nv_and_b32 v8, 1, v8')
    a(f'v_and_b32 v9, 3, v{vLANE}\nv_lshlrev_b32 v9, 4, v9')
    a('v_mad_u32_u24 v9, v8, 56, v9')
    a('v_mul_u32_u24 v4, 2688, v6\nv_add_u32 v4, v4, v9')
    a(f'v_lshlrev_b32 v{vL16}, 4, v{vLANE}')
    a(f'v_cmp_gt_u32 vcc, 56, v{vLANE}\nv_mov_b32 v10, 0x7f000000\nv_cndmask_b32 v10, v10, v{vL16}, vcc')
    a(f's_lshl_b32 s80, s{sG}, 8\ns_lshl_b32 s85, s{sRB}, 7\ns_add_u32 s80, s80, s85')
    a(f's_lshl_b32 s84, s{sROLE}, 3\ns_add_u32 s84, s84, s{sHP}\ns_lshl_b32 s84, s84, 3\ns_add_u32 s84, s84, s{sW}')
    a('s_add_u32 s86, s80, s84\ns_mul_i32 s86, s86, 896')
    a(f's_lshl_b32 s85, s{sW}, 4\ns_add_u32 s80, s80, s85\ns_mul_i32 s80, s80, 896')
    a(f's_mul_i32 s13, s{sW}, {8 * 2688}\ns_mul_i32 s85, s{sHP}, 112\ns_add_u32 s13, s13, s85')
    a(f's_mul_i32 s81, s{sROLE}, 896\ns_add_u32 s81, s81, s13\ns_add_u32 s81, s81, 896')
    a(f's_lshl_b32 s83, s{sW}, 11\ns_lshl_b32 s14, s{sW}, 10\ns_add_u32 s14, s14, {L_W}')
    a('s_waitcnt lgkmcnt(0)')
    a(f's_load_dwordx2 s[{sE}:{sE+1}], s[36:37], 0')
    srd(a, SRD_X, 16, 1835008)
    a(f'buffer_load_dwordx4 v[16:19], v10, {S(SRD_X)}, s86 offen'); vm.issue('row')
    srd(a, SRD_QKV, 18, 1204224)
    def nextcb(r): a(f's_add_u32 s{r}, s{r}, 1\ns_cmp_eq_u32 s{r}, 7\ns_cselect_b32 s{r}, 0, s{r}')
    def dma_w(base_s, cb_s, slot, tag):
        a(f's_mul_i32 s85, s{cb_s}, {64 * 2688}\ns_add_u32 s85, s85, s{base_s}')
        a(f's_add_u32 m0, s14, {slot * 8192}')
        a(f'buffer_load_dwordx4 v4, {S(SRD_QKV)}, s85 offen lds'); vm.issue(tag)
    for blk in range(7):
        a('s_lshl_b32 s85, s82, 7\ns_add_u32 s86, s85, s80')
        a(f's_add_u32 m0, s83, {blk * 16384}')
        a(f'buffer_load_dwordx4 v2, {S(SRD_X)}, s86 offen lds'); vm.issue(f'x{blk}')
        a(f'buffer_load_dwordx4 v3, {S(SRD_X)}, s86 offen offset:1024 lds'); vm.issue(f'x{blk}')
        if blk < 5: dma_w(81, 82, blk, f'w{blk}')
        if blk == 5: a('s_mov_b32 s15, s82')
        if blk < 6: nextcb(82)
        if blk == 0:
            a(f's_lshl_b32 s85, s{sG}, 21\ns_add_u32 s85, s85, {WS_GRP}\ns_add_u32 s{SRD_G}, s36, s85\ns_addc_u32 s{SRD_G+1}, s37, 0')
            a(f's_add_u32 s88, s36, {WS_PART}\ns_addc_u32 s89, s37, 0')
            for p in (22, 26, 28, 30, 32, SRD_G, 88): a(f's_load_dword s90, s[{p}:{p+1}], 0')
    srd(a, SRD_PHI, 20, 25088)
    a(f's_and_b32 s85, s{sW}, 3\ns_lshl_b32 s85, s85, 10\ns_add_u32 m0, s85, {L_PHIW}')
    a(f's_mul_i32 s86, s{sHP}, 3136\ns_add_u32 s86, s86, s85')
    a(f'buffer_load_dwordx4 v{vL16}, {S(SRD_PHI)}, s86 offen lds'); vm.issue('phi')
    a(f's_and_b32 s{SRD_G+1}, s{SRD_G+1}, 0xffff\ns_mov_b32 s{SRD_G+2}, 0x200000\ns_mov_b32 s{SRD_G+3}, 0x20000')
    srd(a, SRD_S, 36, 0x400000); srd(a, SRD_WO, 22, 401408); srd(a, SRD_W1, 26, 1605632)
    srd(a, SRD_W2, 30, 1605632); srd(a, SRD_B1, 28, 3584); srd(a, SRD_OUT, 32, 1835008)
    a(f's_mov_b32 s{sTMO}, {TMO}')
    a(f's_and_b32 s85, s{sW}, 3\ns_lshl_b32 s85, s85, 12')
    a(f'v_and_b32 v5, 31, v{vLANE}')
    a(f'v_lshrrev_b32 v11, 5, v{vLANE}')
    a('v_bfe_u32 v12, v5, 1, 3\nv_xor_b32 v12, v12, v11\nv_lshlrev_b32 v12, 4, v12')
    a('v_lshl_add_u32 v6, v5, 7, v12\nv_add_u32 v6, s85, v6')
    a('v_xor_b32 v7, 32, v6\nv_xor_b32 v8, 64, v6\nv_xor_b32 v9, 96, v6')
    a(f'v_bfe_u32 v12, v{vLANE}, 2, 2\nv_lshl_add_u32 v12, v11, 3, v12\nv_lshlrev_b32 v10, 7, v12')
    a(f's_lshr_b32 s85, s{sW}, 2')
    a(f'v_bfe_u32 v12, v{vLANE}, 3, 1\nv_xor_b32 v12, s85, v12\nv_lshl_add_u32 v10, v12, 6, v10')
    a(f'v_bfe_u32 v12, v{vLANE}, 4, 1\nv_lshl_add_u32 v10, v12, 5, v10')
    a(f'v_and_b32 v12, 3, v{vLANE}\nv_lshl_add_u32 v10, v12, 3, v10')
    a(f'v_add_u32 v10, {L_W}, v10')
    vS16 = 13
    a(f'v_lshlrev_b32 v{vS16}, 4, v5')
    a('v_mov_b32 v14, 0x3f803f80')
    SEL = 240
    a(f'v_lshrrev_b32 v12, 2, v{vLANE}\nv_lshrrev_b32 v11, 4, v{vLANE}\nv_xor_b32 v12, v12, v11\nv_and_b32 v12, 1, v12')
    a('v_cmp_eq_u32 vcc, 0, v12')
    a('s_waitcnt lgkmcnt(0)')
    a(f's_add_u32 s{sE}, s{sE}, 1\ns_addc_u32 s{sE+1}, s{sE+1}, 0')
    a(f'v_mov_b32 v{vE}, s{sE}\nv_mov_b32 v{vE+1}, s{sE+1}')
    a(f's_getreg_b32 s{sXCC}, hwreg(HW_REG_XCC_ID, 0, 4)')
    a(f'v_mov_b32 v{vE+2}, s{sXCC}\nv_mov_b32 v{vZ}, 0')
    if prof: a(f'v_writelane_b32 v{vST}, s96, 16')
    a(f's_lshr_b32 s85, s{sI}, 2\ns_min_u32 s85, s85, 4\ns_sub_u32 s{sTI}, s{sI}, s85')
    a(f's_and_b32 s85, s{sI}, 0x13\ns_cmp_eq_u32 s85, 3\ns_cselect_b32 s{sSPEC}, 1, 0')
    a(f's_mul_i32 s{sR64}, s{sTI}, 37\ns_lshr_b32 s{sR64}, s{sR64}, 8\ns_mul_i32 s85, s{sR64}, 7\ns_sub_u32 s{sCB}, s{sTI}, s85')
    a(f's_and_b32 s{sKQ}, s{sW}, 3\ns_lshl_b32 s{sRT}, s{sR64}, 1\ns_lshr_b32 s85, s{sW}, 2\ns_add_u32 s{sRT}, s{sRT}, s85')
    vm.wait(a, 'row')
    for r in range(4): a(f'v_cndmask_b32 v{SEL+r}, 0, v14, vcc')
    a('v_mov_b32 v20, 0\nv_mov_b32 v21, 0')
    for r in range(4): a(f'v_dot2c_f32_bf16 v20, v{16+r}, v14\nv_dot2c_f32_bf16 v21, v{16+r}, v{16+r}')
    a('s_nop 2')
    for sh in (8, 4, 2, 1):
        a(f'v_add_f32_dpp v20, v20, v20 row_ror:{sh} row_mask:0xf bank_mask:0xf')
        a(f'v_add_f32_dpp v21, v21, v21 row_ror:{sh} row_mask:0xf bank_mask:0xf')
    for v in (20, 21):
        a(f'v_mov_b32 v16, v{v}\nv_permlane16_swap_b32 v16, v{v}\nv_add_f32 v{v}, v16, v{v}')
        half_combine(v, 17, 'v_add_f32')
    stats_from_sums(20, 21)
    a(f'v_mov_b32 v22, v{vE}\nv_mov_b32 v23, v{vE+1}')
    a(f's_lshl_b32 s34, s{sRB}, 11\ns_add_u32 s34, s34, {G_ST1}\ns_lshl_b32 s85, s84, 4\ns_add_u32 s85, s85, s34')
    a(f's_lshl_b32 s86, s{sG}, 5\ns_add_u32 s86, s86, s{sI}\ns_lshl_b32 s86, s86, 4\ns_add_u32 s86, s86, {WS_TAB}')
    a('s_mov_b64 exec, 1')
    a(f'buffer_store_dwordx4 v[20:23], v{vZ}, {S(SRD_G)}, s85 offen sc1'); vm.issue('st')
    a(f'buffer_store_dwordx4 v[{vE}:{vE+3}], v{vZ}, {S(SRD_S)}, s86 offen sc1'); vm.issue('st')
    a('s_mov_b64 exec, -1')
    a(f's_lshl_b32 s85, s{sKQ}, 9\ns_add_u32 s34, s34, s85')
    a(f's_lshl_b32 s35, s{sG}, 9\ns_add_u32 s35, s35, {WS_TAB}')
    a(f's_and_b32 s88, s{sI}, 15\ns_lshl_b32 s88, s88, 3\ns_add_u32 s88, s88, s{sW}')
    a(f's_lshl_b32 s87, s88, 3\ns_add_u32 s87, s87, {G_FV}\ns_lshl_b32 s88, s88, 11')
    stamp(0)

    ACC, BF, AF, CS = 16, 32, 64, 124
    ST1, TAB = 96, 100
    l_st1 = (f'buffer_load_dwordx4 v[{ST1}:{ST1+3}], v{vS16}, {S(SRD_G)}, s34 offen sc1', ST1 + 2)
    l_tab = (f'buffer_load_dwordx4 v[{TAB}:{TAB+3}], v{vS16}, {S(SRD_S)}, s35 offen sc1', TAB)
    def gemm1_block(it, first, issue):
        xb, slot = it % 7, it % 5
        vm.wait(a, f'w{it}')
        a('s_barrier')
        if xb == 4: a('v_add_u32 v6, 0x10000, v6\nv_add_u32 v7, 0x10000, v7\nv_add_u32 v8, 0x10000, v8\nv_add_u32 v9, 0x10000, v9')
        if xb == 0 and it > 0: a('v_subrev_u32 v6, 0x10000, v6\nv_subrev_u32 v7, 0x10000, v7\nv_subrev_u32 v8, 0x10000, v8\nv_subrev_u32 v9, 0x10000, v9')
        xo = (xb % 4) * 16384
        for t in range(4):
            a(f'ds_read_b128 v[{BF+4*t}:{BF+4*t+3}], v{6+t} offset:{xo}')
            for u in range(2):
                a(f'ds_read_b64_tr_b16 v[{AF+4*t+2*u}:{AF+4*t+2*u+1}], v10 offset:{slot*8192 + t*2048 + u*512}')
        issue(it)
        for t in range(4):
            a(f's_waitcnt lgkmcnt({9 - 3*t})')
            c = '0' if (first and t == 0) else f'v[{ACC}:{ACC+15}]'
            a(f'v_mfma_f32_32x32x16_bf16 v[{ACC}:{ACC+15}], v[{AF+4*t}:{AF+4*t+3}], v[{BF+4*t}:{BF+4*t+3}], {c}')
            c = '0' if (first and t == 0) else f'v[{CS}:{CS+3}]'
            a(f'v_mfma_f32_16x16x32_bf16 v[{CS}:{CS+3}], v[{SEL}:{SEL+3}], v[{AF+4*t}:{AF+4*t+3}], {c}')
    def issue1(it):
        if it in (1, 2):
            dma_w(81, 15, (it + 4) % 5, f'w{it+4}'); nextcb(15)
        if it == 3:
            a(l_st1[0]); vm.issue('st1'); a(l_tab[0]); vm.issue('st1')
            a(flagload(vZ, 's87', 104)[0]); vm.issue('st1')
        if it >= 3:
            l = a.newlabel('Lnq')
            a(f's_cmp_eq_u32 s{sROLE}, 0\ns_cbranch_scc1 {l}')
            q = list(vm.q); dma_w(13, 15, (it + 4) % 5, 'tmp'); vm.q = q; nextcb(15)
            a.label(l)
    for it in range(7): gemm1_block(it, it == 0, issue1)
    stamp(1)
    RB1, RA1, vRSTD = 112, 116, 5
    def mean_frag(vnm, vB, t0):
        a(f'v_cvt_pk_bf16_f32 v{vB}, v{vnm}, v{vnm}')
        a(f'v_lshlrev_b32 v{t0}, 16, v{vB}')
        a(f'v_sub_f32 v{t0}, v{vnm}, v{t0}')
        a(f'v_cvt_pk_bf16_f32 v{vB+1}, v{t0}, v{t0}')
    def cs_frag(vcs, vA, t0):
        a(f'v_cvt_pk_bf16_f32 v{t0}, v{vcs}, v{vcs}')
        a(f'v_lshlrev_b32 v{t0}, 16, v{t0}')
        a(f'v_sub_f32 v{t0}, v{vcs}, v{t0}')
        a(f'v_cvt_pk_bf16_f32 v{vA}, v{vcs}, v{t0}')
        a(f'v_mov_b32 v{vA+1}, v{vA}')
    lA, lJ = a.newlabel('LwA'), a.newlabel('LwJ')
    a(f's_cmp_eq_u32 s{sROLE}, 0\ns_cbranch_scc1 {lA}\ns_waitcnt vmcnt(4)\ns_branch {lJ}')
    a.label(lA); a('s_waitcnt vmcnt(0)'); a.label(lJ)
    vm.q = ['st1x']
    lr, ld, lc = a.newlabel('Lsr'), a.newlabel('Lsd'), a.newlabel('Lsc')
    a(f's_branch {lc}')
    a.label(lr); a(l_st1[0]); a(l_tab[0]); a('s_waitcnt vmcnt(0)')
    a.label(lc)
    a(f'v_cmp_ne_u64 s[16:17], s[{sE}:{sE+1}], v[{ST1+2}:{ST1+3}]\nv_cmp_ne_u64 s[18:19], s[{sE}:{sE+1}], v[{TAB}:{TAB+1}]')
    a(f'v_cmp_ne_u32 vcc, s{sXCC}, v{TAB+2}')
    a(f's_or_b64 s[16:17], s[16:17], s[18:19]\ns_cbranch_scc0 {ld}')
    spin(lr, ld)
    a.label(ld)
    a(f's_or_b32 s{sMODE}, vcc_lo, vcc_hi')
    if force_slow: a(f's_mov_b32 s{sMODE}, 1')
    mean_frag(ST1, RB1, 120)
    a(f'v_mov_b32 v{vRSTD}, v{ST1+1}')
    a(f'v_mov_b32 v{RB1+2}, 0\nv_mov_b32 v{RB1+3}, 0\nv_mov_b32 v{RA1+2}, 0\nv_mov_b32 v{RA1+3}, 0')
    exec_hi(); a(f'v_mov_b32 v{RB1}, 0\nv_mov_b32 v{RB1+1}, 0'); exec_all()
    def rank1():
        cs_frag(CS, RA1, 120)
        a(f'v_mfma_f32_32x32x16_bf16 v[{ACC}:{ACC+15}], v[{RA1}:{RA1+3}], v[{RB1}:{RB1+3}], v[{ACC}:{ACC+15}]')
    rank1()
    PH = 80
    def feature_map(mid=None, mid2=None):
        KF, WF, EP, EM = 32, 40, 48, 64
        a(f'v_lshrrev_b32 v120, 5, v{vLANE}\nv_bfe_u32 v121, v{vLANE}, 2, 2\nv_lshl_add_u32 v120, v120, 2, v121\nv_mul_u32_u24 v120, 56, v120')
        a(f'v_bfe_u32 v121, v{vLANE}, 4, 1\nv_lshl_add_u32 v120, v121, 5, v120')
        a(f'v_and_b32 v121, 3, v{vLANE}\nv_lshl_add_u32 v120, v121, 3, v120')
        a(f's_lshr_b32 s85, s{sW}, 2\ns_mul_i32 s85, s85, 1568\ns_add_u32 s85, s85, {L_PHIW}')
        a('v_add_u32 v120, s85, v120')
        for t in range(2):
            for u in range(2):
                a(f'ds_read_b64_tr_b16 v[{WF+4*t+2*u}:{WF+4*t+2*u+1}], v120 offset:{(16*t + 8*u) * 56}')
        for r in range(8):
            a(f'v_cvt_pk_bf16_f32 v{KF+r}, v{ACC+2*r}, v{ACC+2*r+1}')
        a('s_waitcnt lgkmcnt(0)')
        exec_hi(); a(f'v_mov_b32 v{WF+6}, 0\nv_mov_b32 v{WF+7}, 0'); exec_all()
        a(f'v_mfma_f32_32x32x16_bf16 v[{ACC}:{ACC+15}], v[{WF}:{WF+3}], v[{KF}:{KF+3}], 0')
        a(f'v_mfma_f32_32x32x16_bf16 v[{ACC}:{ACC+15}], v[{WF+4}:{WF+7}], v[{KF+4}:{KF+7}], v[{ACC}:{ACC+15}]')
        a(f'v_mul_f32 v122, {LOG2E}, v{vRSTD}')
        exec_hi()
        for r in range(12, 16): a(f'v_mov_b32 v{ACC+r}, v{ACC}')
        exec_all()
        P = ACC
        a(f'v_max3_f32 v124, v{P}, v{P+1}, v{P+2}\nv_min3_f32 v126, v{P}, v{P+1}, v{P+2}')
        for r in range(3, 15, 2):
            a(f'v_max3_f32 v124, v124, v{P+r}, v{P+r+1}\nv_min3_f32 v126, v126, v{P+r}, v{P+r+1}')
        a(f'v_max_f32 v124, v124, v{P+15}\nv_min_f32 v126, v126, v{P+15}')
        half_combine(124, 120, 'v_max_f32'); half_combine(126, 121, 'v_min_f32')
        a('v_mul_f32 v124, v122, v124\nv_mul_f32 v126, v122, v126')
        for r in range(0, 16, 2):
            a(f'v_pk_fma_f32 v[{EP+r}:{EP+r+1}], v[{P+r}:{P+r+1}], v[122:123], v[124:125] op_sel_hi:[1,0,0] neg_lo:[0,0,1] neg_hi:[0,0,1]')
            a(f'v_pk_fma_f32 v[{EM+r}:{EM+r+1}], v[{P+r}:{P+r+1}], v[122:123], v[126:127] op_sel_hi:[1,0,0] neg_lo:[1,0,0] neg_hi:[1,0,0]')
        if mid: mid()
        for r in range(16):
            a(f'v_exp_f32 v{EP+r}, v{EP+r}')
            a(f'v_exp_f32 v{EM+r}, v{EM+r}')
        if mid2: mid2()
        exec_hi()
        for r in range(12, 16): a(f'v_mov_b32 v{EP+r}, 0\nv_mov_b32 v{EM+r}, 0')
        exec_all()
        a(f'v_pk_add_f32 v[124:125], v[{EP}:{EP+1}], v[{EP+2}:{EP+3}]\nv_pk_add_f32 v[126:127], v[{EM}:{EM+1}], v[{EM+2}:{EM+3}]')
        for r in range(4, 16, 2):
            a(f'v_pk_add_f32 v[124:125], v[124:125], v[{EP+r}:{EP+r+1}]\nv_pk_add_f32 v[126:127], v[126:127], v[{EM+r}:{EM+r+1}]')
        a('v_add_f32 v124, v124, v125\nv_add_f32 v126, v126, v127')
        half_combine(124, 120, 'v_add_f32'); half_combine(126, 121, 'v_add_f32')
        a('v_rcp_f32 v124, v124\nv_rcp_f32 v126, v126')
        for r in range(0, 16, 2):
            a(f'v_pk_mul_f32 v[{EP+r}:{EP+r+1}], v[{EP+r}:{EP+r+1}], v[124:125] op_sel_hi:[1,0]')
            a(f'v_pk_mul_f32 v[{EM+r}:{EM+r+1}], v[{EM+r}:{EM+r+1}], v[126:127] op_sel_hi:[1,0]')
        for r in range(8):
            a(f'v_cvt_pk_bf16_f32 v{PH+r}, v{EP+2*r}, v{EP+2*r+1}')
            a(f'v_cvt_pk_bf16_f32 v{PH+8+r}, v{EM+2*r}, v{EM+2*r+1}')
    def dma_rows(srd_r, voff, soff_s, pitch, nrows8, lds_base_s, lds_off, tag, first=0):
        for n in range(nrows8):
            a(f's_add_u32 m0, s{lds_base_s}, {lds_off + n * 1024}')
            a(f's_add_u32 s85, s{soff_s}, {(first + n) * 8 * pitch}')
            a(f'buffer_load_dwordx4 v{voff}, {S(srd_r)}, s85 offen lds'); vm.issue(tag)
    vO896, vO3584, vXR, vB1 = 2, 3, 244, 248
    def pf_setup():
        a(f'v_lshrrev_b32 v120, 3, v{vLANE}\nv_bfe_u32 v121, v{vLANE}, 4, 1\nv_lshlrev_b32 v121, 2, v121')
        a(f'v_and_b32 v122, 7, v{vLANE}\nv_xor_b32 v121, v121, v122\nv_lshlrev_b32 v121, 4, v121')
        a(f'v_mul_u32_u24 v{vO896}, 896, v120\nv_add_u32 v{vO896}, v{vO896}, v121')
        a(f'v_mul_u32_u24 v{vO3584}, 3584, v120\nv_add_u32 v{vO3584}, v{vO3584}, v121')
        a(f's_mul_i32 s89, s{sW}, 7168')
    def pf_wo():
        a(f's_mul_i32 s90, s{sW}, {56 * 896}\ns_lshl_b32 s91, s{sCB}, 7\ns_add_u32 s90, s90, s91')
        dma_rows(SRD_WO, vO896, 90, 896, 7, 89, L_WO, 'wo')
    def pf_w1():
        a(f's_mul_i32 s89, s{sW}, 7168')
        a(f's_mul_i32 s90, s{sW}, {56 * 3584}\ns_lshl_b32 s91, s{sTI}, 7\ns_add_u32 s90, s90, s91')
        dma_rows(SRD_W1, vO3584, 90, 3584, 7, 89, L_W1, 'w1')
        a(f's_lshl_b32 s90, s{sG}, 8\ns_lshl_b32 s91, s{sRT}, 5\ns_add_u32 s90, s90, s91')
        a(f's_mul_i32 s90, s90, 896\ns_lshl_b32 s91, s{sCB}, 7\ns_add_u32 s90, s90, s91\ns_lshl_b32 s91, s{sKQ}, 5\ns_add_u32 s{sXO}, s90, s91')
        a(f'v_and_b32 v120, 31, v{vLANE}\nv_mul_u32_u24 v4, 896, v120\nv_lshrrev_b32 v121, 5, v{vLANE}\nv_lshl_add_u32 v4, v121, 4, v4')
        a(f'buffer_load_dwordx4 v[{vXR}:{vXR+3}], v4, {S(SRD_X)}, s{sXO} offen'); vm.issue('xr')
        a(f'v_lshlrev_b32 v120, 1, v120\ns_lshl_b32 s91, s{sTI}, 7')
        a(f'buffer_load_ushort v{vB1}, v120, {S(SRD_B1)}, s91 offen'); vm.issue('b1')
        a(f'buffer_load_ushort v{vB1+1}, v120, {S(SRD_B1)}, s91 offen offset:64'); vm.issue('b1')

    a(f's_cmp_lg_u32 s{sROLE}, 0\ns_cbranch_scc1 L_roleB')
    hist_split = list(a.hist)
    if stop == 1: dump(ACC, 16, 0); dump(vRSTD, 1, 1); a('s_branch L_end')
    vm.q = []
    RG = 128
    a('s_barrier')
    lsp, lj = a.newlabel('Lsp'), a.newlabel('Lj')
    a(f's_cmp_lg_u32 s{sSPEC}, 0\ns_cbranch_scc1 {lsp}')
    pf_setup(); pf_wo()
    a(f's_branch {lj}')
    a.label(lsp)
    a(f's_lshl_b32 s85, s{sG}, 2\ns_lshr_b32 s86, s{sI}, 2\ns_add_u32 s85, s85, s86')
    a(f's_and_b32 s86, s85, 1\ns_lshl_b32 s86, s86, 12\ns_lshl_b32 s90, s{sW}, 9\ns_add_u32 s86, s86, s90\ns_lshr_b32 s85, s85, 1')
    a(f's_lshl_b32 s92, s85, 13\ns_add_u32 s92, s92, s86\ns_add_u32 s92, s92, {WS_FIN}')
    a(f's_lshl_b32 s93, s85, 17\ns_add_u32 s93, s93, s86\ns_add_u32 s93, s93, {WS_PART}')
    a(f'v_lshrrev_b32 v120, 5, v{vLANE}\nv_lshl_add_u32 v160, v120, 13, v{vS16}')
    pl = []
    for p in range(8):
        if p: a(f'v_add_u32 v{160+p}, {p * 16384}, v160')
        pl.append((f'buffer_load_dwordx4 v[{RG+4*p}:{RG+4*p+3}], v{160+p}, {S(SRD_S)}, s93 offen sc1', RG + 4 * p + 2))
    for t, _ in pl: a(t)
    a.label(lj)
    vm.q = []
    VG = 96
    vloads = [f'buffer_load_dwordx4 v[{VG+4*n}:{VG+4*n+3}], v{vL16}, {S(SRD_G)}, s88 offen offset:{n*1024} sc1' for n in range(2)]
    fv = flagload(vZ, 's87', 104)
    def mid(): a(fv[0]); vm.issue('fv')
    def mid2():
        poll([fv], first_tag='fv')
        for t in vloads: a(t); vm.issue('v')
    feature_map(mid, mid2)
    stamp(2)
    a(f's_lshr_b32 s86, s{sW}, 2\ns_lshl_b32 s85, s{sKQ}, 5\ns_lshl_b32 s86, s86, 7\ns_add_u32 s85, s85, s86')
    a(f'v_and_b32 v120, 31, v{vLANE}\nv_add_u32 v120, s85, v120\nv_lshrrev_b32 v121, 5, v{vLANE}\nv_lshlrev_b32 v121, 3, v121')
    a(f'v_mad_u32_u24 v122, v120, {PHI_P // 8}, 0\nv_lshl_add_u32 v122, v122, 3, v121')
    a(f'v_mad_u32_u24 v123, v120, {V_P // 8}, 0\nv_lshl_add_u32 v123, v123, 3, v121')
    for n in range(8):
        a(f'ds_write_b64 v122, v[{PH+2*n}:{PH+2*n+1}] offset:{L_PHI + n * 16}')
    vm.wait(a, 'v')
    for n in range(4):
        a(f'ds_write_b64 v123, v[{VG+2*n}:{VG+2*n+1}] offset:{L_V + n * 16}')
    a(f'v_lshrrev_b32 v120, 4, v{vLANE}\nv_bfe_u32 v121, v{vLANE}, 2, 2\nv_lshl_add_u32 v120, v120, 3, v121\nv_add_u32 v120, s86, v120')
    a(f'v_and_b32 v121, 3, v{vLANE}\nv_lshlrev_b32 v121, 3, v121')
    a(f'v_mad_u32_u24 v122, v120, {PHI_P // 8}, 0\nv_lshl_add_u32 v122, v122, 3, v121')
    a(f's_lshl_b32 s85, s{sKQ}, 5\nv_add_u32 v122, s85, v122')
    a(f'v_mad_u32_u24 v123, v120, {V_P // 8}, 0\nv_lshl_add_u32 v123, v123, 3, v121')
    a(f's_lshl_b32 s90, s{sG}, 1\ns_add_u32 s90, s90, s{sRB}')
    a(f's_lshl_b32 s85, s{sHP}, 1\ns_lshr_b32 s86, s{sW}, 2\ns_add_u32 s85, s85, s86\ns_lshl_b32 s85, s85, 4\ns_add_u32 s85, s85, s90\ns_lshl_b32 s85, s85, 13')
    a(f's_lshl_b32 s86, s{sKQ}, 11\ns_add_u32 s85, s85, s86\ns_add_u32 s90, s85, {WS_PART}')
    for dt in range(2):
        g = 24 + 4 * dt
        a(f'v_mov_b32 v{g+2}, v{vE}\nv_mov_b32 v{g+3}, v{vE+1}')
    a('s_waitcnt lgkmcnt(0)\ns_barrier')
    stamp(3)
    KA, KB = 32, 48
    def kv_read(u):
        for z in range(2):
            a(f'ds_read_b64_tr_b16 v[{KA+4*u+2*z}:{KA+4*u+2*z+1}], v122 offset:{L_PHI + (32*u + 4*z) * PHI_P}')
        for dt in range(2):
            for z in range(2):
                b = KB + 8*u + 4*dt + 2*z
                a(f'ds_read_b64_tr_b16 v[{b}:{b+1}], v123 offset:{L_V + (32*u + 4*z) * V_P + dt * 32}')
    kv_read(0); kv_read(1)
    for u in range(4):
        a(f's_waitcnt lgkmcnt({6 if u < 3 else 0})')
        if u + 2 < 4: kv_read(u + 2)
        for dt in range(2):
            c = '0' if u == 0 else f'v[{ACC+4*dt}:{ACC+4*dt+3}]'
            a(f'v_mfma_f32_16x16x32_bf16 v[{ACC+4*dt}:{ACC+4*dt+3}], v[{KA+4*u}:{KA+4*u+3}], v[{KB+8*u+4*dt}:{KB+8*u+4*dt+3}], {c}')
    for dt in range(2):
        g = 24 + 4 * dt
        a(f'v_cvt_pk_bf16_f32 v{g}, v{ACC+4*dt}, v{ACC+4*dt+1}\nv_cvt_pk_bf16_f32 v{g+1}, v{ACC+4*dt+2}, v{ACC+4*dt+3}')
        a(f'buffer_store_dwordx4 v[{g}:{g+3}], v{vL16}, {S(SRD_S)}, s90 offen offset:{dt*1024} sc1')
    stamp(4)
    a(f's_cmp_lg_u32 s{sSPEC}, 0\ns_cbranch_scc1 L_special')
    a('s_barrier')
    pf_w1()
    a('s_branch L_stage3')

    a.label('L_special')
    poll(pl)
    for p in range(8):
        g = RG + 4 * p
        a(f'v_lshlrev_b32 v{g+2}, 16, v{g+1}\nv_and_b32 v{g+3}, 0xffff0000, v{g+1}')
        a(f'v_and_b32 v{g+1}, 0xffff0000, v{g}\nv_lshlrev_b32 v{g}, 16, v{g}')
    for st in (4, 2, 1):
        for p in range(st):
            g, h_ = RG + 4 * p, RG + 4 * (p + st)
            a(f'v_pk_add_f32 v[{g}:{g+1}], v[{g}:{g+1}], v[{h_}:{h_+1}]\nv_pk_add_f32 v[{g+2}:{g+3}], v[{g+2}:{g+3}], v[{h_+2}:{h_+3}]')
    for r in range(4): a(f'v_mov_b32 v{RG+4+r}, v{RG+r}')
    for r in range(4): a(f'v_permlane32_swap_b32 v{RG+4+r}, v{RG+r}')
    a(f'v_pk_add_f32 v[{RG}:{RG+1}], v[{RG}:{RG+1}], v[{RG+4}:{RG+5}]\nv_pk_add_f32 v[{RG+2}:{RG+3}], v[{RG+2}:{RG+3}], v[{RG+6}:{RG+7}]')
    a(f'v_cvt_pk_bf16_f32 v24, v{RG}, v{RG+1}\nv_cvt_pk_bf16_f32 v25, v{RG+2}, v{RG+3}')
    a('s_mov_b32 exec_hi, 0')
    a(f'buffer_store_dwordx4 v[24:27], v{vL16}, {S(SRD_S)}, s92 offen sc1')
    a('s_mov_b32 exec_hi, -1')
    stamp(5)
    a(f's_lshr_b32 s85, s{sI}, 2\ns_lshl_b32 s85, s85, 1\ns_lshr_b32 s86, s{sW}, 2\ns_add_u32 s94, s85, s86')
    a(f's_mul_i32 s86, s{sKQ}, 7\ns_lshl_b32 s91, s94, 5\ns_add_u32 s91, s91, s86\ns_lshl_b32 s91, s91, 3\ns_add_u32 s91, s91, {G_FH}')
    a(f's_mul_i32 s90, s94, 28\ns_add_u32 s90, s90, s86\ns_lshl_b32 s90, s90, 10\ns_add_u32 s90, s90, {G_H}')
    a(f'v_min_u32 v122, 6, v{vLANE}\nv_lshlrev_b32 v122, 3, v122\nv_add_u32 v123, 4096, v{vL16}')
    a('v_mov_b32 v20, 0\nv_mov_b32 v21, 0')
    a(f's_lshl_b32 s85, s{sW}, 9\nv_lshlrev_b32 v120, 3, v{vLANE}\nv_add_u32 v121, s85, v120')
    a(f's_lshr_b32 s85, s{sW}, 2\ns_lshl_b32 s85, s85, 11\nv_add_u32 v120, s85, v120')
    a(f's_lshl_b32 s92, s94, 9\ns_add_u32 s92, s92, {G_ST2}')
    poll([flagload(122, 's91', 124)])
    for n in range(7):
        a(f'buffer_load_dwordx4 v[{32+4*n}:{35+4*n}], v{vL16 if n < 4 else 123}, {S(SRD_G)}, s90 offen offset:{(n & 3) * 1024} sc1')
    for n in range(7):
        a(f's_waitcnt vmcnt({6 - n})')
        for r in range(4): a(f'v_dot2c_f32_bf16 v20, v{32+4*n+r}, v14\nv_dot2c_f32_bf16 v21, v{32+4*n+r}, v{32+4*n+r}')
    a('ds_write_b64 v121, v[20:21] offset:57344')
    a('s_waitcnt lgkmcnt(0)\ns_barrier')
    a(f's_cmp_lg_u32 s{sKQ}, 0\ns_cbranch_scc1 L_fin')
    for n in range(1, 4): a(f'ds_read_b64 v[{30+2*n}:{31+2*n}], v120 offset:{57344 + n * 512}')
    a('s_waitcnt lgkmcnt(0)')
    for n in range(1, 4): a(f'v_pk_add_f32 v[20:21], v[20:21], v[{30+2*n}:{31+2*n}]')
    half_combine(20, 16, 'v_add_f32'); half_combine(21, 17, 'v_add_f32')
    stats_from_sums(20, 21)
    a(f'v_mov_b32 v22, v{vE}\nv_mov_b32 v23, v{vE+1}')
    a('s_mov_b32 exec_hi, 0')
    publish([f'buffer_store_dwordx4 v[20:23], v{vL16}, {S(SRD_G)}, s92 offen'], None)
    a('s_mov_b32 exec_hi, -1')
    stamp(6)
    a('s_branch L_fin')

    a.label('L_roleB')
    a.hist = list(hist_split)
    vm.q = ['w7', 'w8', 'w9', 'w10']
    if stop == 1: dump(ACC, 16, 0); dump(vRSTD, 1, 1); a('s_branch L_end')
    for r in range(0, 16, 2): a(f'v_pk_mul_f32 v[{ACC+r}:{ACC+r+1}], v[{ACC+r}:{ACC+r+1}], v[{ST1}:{ST1+1}] op_sel:[0,1]')
    for r in range(8): a(f'v_cvt_pk_bf16_f32 v{104+r}, v{ACC+2*r}, v{ACC+2*r+1}')
    exec_hi(); a('v_mov_b32 v110, 0x3f80\nv_mov_b32 v111, 0'); exec_all()
    publish([f'buffer_store_dwordx4 v[{104+4*n}:{107+4*n}], v{vL16}, {S(SRD_G)}, s88 offen offset:{n*1024}' for n in range(2)], 87)
    vm.q = ['w7', 'w8', 'w9', 'w10', 'flag']
    stamp(2)
    FG = 128
    a(f'v_bfe_u32 v160, v{vLANE}, 4, 1\nv_lshlrev_b32 v160, 10, v160\nv_lshrrev_b32 v161, 5, v{vLANE}\nv_lshl_add_u32 v160, v161, 8, v160')
    a(f'v_and_b32 v161, 15, v{vLANE}\nv_lshl_add_u32 v160, v161, 4, v160\nv_add_u32 v161, 4096, v160')
    a(f's_lshl_b32 s92, s{sHP}, 1\ns_lshr_b32 s86, s{sW}, 2\ns_add_u32 s92, s92, s86')
    a(f's_lshl_b32 s93, s92, 13\ns_add_u32 s93, s93, {WS_FIN}')
    fl = []
    for t in range(4):
        for y in range(2):
            g = FG + 8 * t + 4 * y
            fl.append((f'buffer_load_dwordx4 v[{g}:{g+3}], v{160 + (t >> 1)}, {S(SRD_S)}, s93 offen offset:{(t & 1) * 2048 + y * 512} sc1', g + 2))
    def issue2(it):
        if it + 4 < 14:
            dma_w(13, 15, (it + 4) % 5, f'w{it+4}'); nextcb(15)
        if it == 10:
            a(f's_lshl_b32 s85, s{sKQ}, 11\ns_add_u32 s85, s85, s93')
            for n in range(2):
                a(f'buffer_load_dwordx4 v[{FG}:{FG+3}], v{vL16}, {S(SRD_S)}, s85 offen offset:{n*1024} sc1'); vm.issue('warm')
    for it in range(7, 14): gemm1_block(it, it == 7, issue2)
    rank1()
    stamp(3)
    a('s_barrier')
    pf_setup(); pf_wo(); pf_w1()
    feature_map()
    stamp(4)
    a(f's_lshl_b32 s85, s{sRB}, 2\ns_add_u32 s85, s85, s{sKQ}\ns_lshl_b32 s85, s85, 4\ns_add_u32 s85, s85, s92')
    a(f's_lshl_b32 s90, s85, 11\ns_add_u32 s90, s90, {G_O}\ns_lshl_b32 s91, s85, 3\ns_add_u32 s91, s91, {G_FO}')
    poll(fl)
    stamp(5)
    for t in range(4):
        g = FG + 8 * t
        a(f'v_mov_b32 v{g+2}, v{g+4}\nv_mov_b32 v{g+3}, v{g+5}')
    for t in range(4):
        g = FG + 8 * t
        c = '0' if t == 0 else f'v[{ACC}:{ACC+15}]'
        a(f'v_mfma_f32_32x32x16_bf16 v[{ACC}:{ACC+15}], v[{g}:{g+3}], v[{PH+4*t}:{PH+4*t+3}], {c}')
    a(f'v_mov_b32 v120, v{ACC+12}\nv_mov_b32 v122, v{ACC+12}')
    a('v_permlane32_swap_b32 v120, v122')
    a('v_add_f32 v122, 0x358637bd, v122\nv_rcp_f32 v122, v122')
    for r in range(0, 16, 2): a(f'v_pk_mul_f32 v[{ACC+r}:{ACC+r+1}], v[{ACC+r}:{ACC+r+1}], v[122:123] op_sel_hi:[1,0]')
    for r in range(8): a(f'v_cvt_pk_bf16_f32 v{32+r}, v{ACC+2*r}, v{ACC+2*r+1}')
    exec_hi(); a('v_mov_b32 v38, 0\nv_mov_b32 v39, 0'); exec_all()
    publish([f'buffer_store_dwordx4 v[{32+4*c}:{35+4*c}], v{vL16}, {S(SRD_G)}, s90 offen offset:{c*1024}' for c in range(2)], 91)

    a.label('L_stage3')
    a.fence()
    vT0, vT1 = 6, 7
    a(f'v_lshrrev_b32 v120, 5, v{vLANE}\nv_bfe_u32 v121, v{vLANE}, 2, 2\nv_lshl_add_u32 v120, v120, 2, v121\nv_lshlrev_b32 v{vT0}, 7, v120')
    a(f'v_bfe_u32 v121, v{vLANE}, 3, 1\nv_lshl_add_u32 v{vT0}, v121, 6, v{vT0}')
    a(f'v_bfe_u32 v121, v{vLANE}, 4, 1\nv_lshl_add_u32 v{vT0}, v121, 5, v{vT0}')
    a(f'v_and_b32 v121, 3, v{vLANE}\nv_lshl_add_u32 v{vT0}, v121, 3, v{vT0}')
    a(f'v_xor_b32 v{vT1}, 64, v{vT0}')
    a(f's_lshl_b32 s85, s{sKQ}, 5')
    a(f'v_xor_b32 v8, s85, v{vT0}\nv_xor_b32 v9, s85, v{vT1}')
    a(f's_mul_i32 s85, s{sKQ}, {112 * 128}\ns_add_u32 s85, s85, {L_WO}')
    a('v_add_u32 v120, s85, v8\nv_add_u32 v121, s85, v9')
    a(f's_mul_i32 s85, s{sW}, 7168\nv_add_u32 v122, s85, v{vT0}\nv_add_u32 v123, s85, v{vT1}')
    a('s_waitcnt vmcnt(0)\ns_barrier'); vm.q = []
    stamp(6)
    WA, OB, A3 = 160, 128, 16
    cnt = 0
    for hd in range(4):
        for c in range(2):
            for nt in range(2):
                for u in range(2):
                    b = WA + ((hd * 2 + c) * 2 + nt) * 4 + 2 * u
                    a(f'ds_read_b64_tr_b16 v[{b}:{b+1}], v{120+nt} offset:{(28*hd + 16*c + 8*u) * 128}')
                    cnt += 1
                    if cnt % 12 == 0: a('s_waitcnt lgkmcnt(2)')
    a('s_waitcnt lgkmcnt(0)')
    for nt in range(2):
        for n in range(7):
            b = 64 + nt * 16 + 2 * n
            a(f'ds_read_b64_tr_b16 v[{b}:{b+1}], v{122+nt} offset:{n * 1024}')
        a(f'v_mov_b32 v{64+nt*16+14}, 0\nv_mov_b32 v{64+nt*16+15}, 0')
    a(f's_lshl_b32 s85, s{sRT}, 4\ns_lshl_b32 s86, s{sKQ}, 2\ns_add_u32 s85, s85, s86')
    a(f's_lshl_b32 s90, s85, 11\ns_add_u32 s90, s90, {G_O}\ns_lshl_b32 s91, s85, 3\ns_add_u32 s91, s91, {G_FO}')
    a(f'v_and_b32 v122, 3, v{vLANE}\nv_lshlrev_b32 v122, 3, v122\nv_add_u32 v123, 4096, v{vL16}')
    fo = flagload(122, 's91', 124)
    a(fo[0]); vm.issue('fo')
    a(f'v_permlane32_swap_b32 v{vXR}, v{vXR+2}\nv_permlane32_swap_b32 v{vXR+1}, v{vXR+3}')
    for r in range(4):
        a(f'v_lshlrev_b32 v{48+2*r}, 16, v{vXR+r}\nv_and_b32 v{49+2*r}, 0xffff0000, v{vXR+r}')
    exec_hi()
    for nt in range(2):
        b = WA + (7 * 2 + nt) * 4 + 2
        a(f'v_mov_b32 v{b}, 0\nv_mov_b32 v{b+1}, 0')
    exec_all()
    a('s_waitcnt lgkmcnt(0)')
    for n in range(4):
        for nt in range(2):
            c = '0' if n == 0 else f'v[{56+4*nt}:{59+4*nt}]'
            a(f'v_mfma_f32_16x16x32_bf16 v[{56+4*nt}:{59+4*nt}], v[{SEL}:{SEL+3}], v[{64+nt*16+4*n}:{67+nt*16+4*n}], {c}')
    a(f's_lshl_b32 s85, s{sW}, 9\nv_lshlrev_b32 v126, 3, v{vLANE}\nv_add_u32 v127, s85, v126')
    a('s_barrier')
    a('v_mov_b32 v57, v60')
    a(f'ds_write_b64 v127, v[56:57] offset:{L_CS}')
    poll([fo], first_tag='fo')
    stamp(7)
    for n in range(8):
        a(f'buffer_load_dwordx4 v[{OB+4*n}:{OB+4*n+3}], v{vL16 if n < 4 else 123}, {S(SRD_G)}, s90 offen offset:{(n & 3) * 1024} sc1'); vm.issue(f'o{n}')
    a(f's_mul_i32 s95, s{sW}, {224 * 896}\ns_lshl_b32 s85, s{sCB}, 7\ns_add_u32 s95, s95, s85')
    a(f's_mul_i32 s96, s{sW}, 6144')
    dma_rows(SRD_W2, vO896, 95, 896, 6, 96, L_X1, 'w2a')
    def red_addr(nsrc, base):
        per = nsrc * 2048
        for q in range(1, nsrc + 1):
            a(f's_xor_b32 s85, s{sW}, {q}\ns_mul_i32 s85, s85, {per}\ns_add_u32 s85, s85, {base + (q - 1) * 2048}')
            a(f'v_add_u32 v{111+q}, s85, v{vL16}')
        a(f's_mul_i32 s85, s{sW}, {per}\ns_add_u32 s85, s85, {base}\nv_add_u32 v111, s85, v{vL16}')
    red_addr(3, L_SCR)
    a(f's_lshl_b32 s85, s{sCB}, 2\ns_add_u32 s85, s85, s{sKQ}')
    a(f's_mul_i32 s90, s{sRT}, 28\ns_add_u32 s90, s90, s85\ns_lshl_b32 s90, s90, 10\ns_add_u32 s90, s90, {G_H}')
    a(f's_lshl_b32 s91, s{sRT}, 5\ns_add_u32 s91, s91, s85\ns_lshl_b32 s91, s91, 3\ns_add_u32 s91, s91, {G_FH}')
    for n in range(8):
        vm.wait(a, f'o{n}')
        for nt in (1, 0):
            c = '0' if n == 0 else f'v[{A3+16*nt}:{A3+16*nt+15}]'
            b = WA + (n * 2 + nt) * 4
            a(f'v_mfma_f32_32x32x16_bf16 v[{A3+16*nt}:{A3+16*nt+15}], v[{b}:{b+3}], v[{OB+4*n}:{OB+4*n+3}], {c}')
    for q in (2, 3, 1):
        for z in range(2):
            b = A3 + 8 * q + 4 * z
            a(f'ds_write_b128 v{111+q}, v[{b}:{b+3}] offset:{z*1024}')
    for r in range(0, 8, 2):
        a(f'v_pk_add_f32 v[{A3+r}:{A3+r+1}], v[{A3+r}:{A3+r+1}], v[{48+r}:{49+r}]')
    a('s_waitcnt lgkmcnt(0)\ns_barrier')
    for n in range(6):
        a(f'ds_read_b128 v[{OB+4*n}:{OB+4*n+3}], v111 offset:{n*1024}')
    for n in range(8):
        a(f'ds_read_b64 v[{64+2*n}:{65+2*n}], v126 offset:{L_CS + n * 512}')
    for n in range(6):
        a(f's_waitcnt lgkmcnt({13 - n})')
        z = n & 1
        for r in range(0, 4, 2):
            a(f'v_pk_add_f32 v[{A3+4*z+r}:{A3+4*z+r+1}], v[{A3+4*z+r}:{A3+4*z+r+1}], v[{OB+4*n+r}:{OB+4*n+r+1}]')
    for r in range(4): a(f'v_cvt_pk_bf16_f32 v{vXR+r}, v{A3+2*r}, v{A3+2*r+1}')
    publish([f'buffer_store_dwordx4 v[{vXR}:{vXR+3}], v{vL16}, {S(SRD_G)}, s90 offen'], 91)
    stamp(8)
    a('s_waitcnt lgkmcnt(0)')
    for st in (4, 2, 1):
        for p in range(st): a(f'v_pk_add_f32 v[{64+2*p}:{65+2*p}], v[{64+2*p}:{65+2*p}], v[{64+2*(p+st)}:{65+2*(p+st)}]')
    RA4 = 80
    for nt in range(2):
        cs_frag(64 + nt, RA4 + 4 * nt, 120)
        a(f'v_lshl_or_b32 v{RA4+4*nt+2}, v{vB1+nt}, 16, v{vB1+nt}\nv_mov_b32 v{RA4+4*nt+3}, v{vB1+nt}')
    exec_hi()
    for r in range(8): a(f'v_mov_b32 v{RA4+r}, 0')
    exec_all()

    HB, A4, AS = 128, 16, 48
    a(f's_lshl_b32 s91, s{sW}, 8\ns_add_u32 s91, s91, {G_FH}')
    a(f'v_min_u32 v122, 27, v{vLANE}\nv_lshlrev_b32 v122, 3, v122')
    a(f's_mul_i32 s90, s{sW}, {28 * 1024}\ns_add_u32 s90, s90, {G_H}')
    a(f's_lshl_b32 s92, s{sW}, 9\ns_add_u32 s92, s92, {G_ST2}')
    def a4_read(t):
        s = AS + (t % 4) * 8
        for nt in range(2):
            for u in range(2):
                a(f'ds_read_b64_tr_b16 v[{s+4*nt+2*u}:{s+4*nt+2*u+1}], v{vT0+nt} offset:{L_W1 + t*2048 + u*1024}')
    for t in range(3): a4_read(t)
    a('s_barrier')
    poll([flagload(122, 's91', 124)])
    stamp(9)
    for t in range(28):
        if t % 4 == 0 and t > 0: a('s_add_u32 s90, s90, 4096')
        a(f'buffer_load_dwordx4 v[{HB+4*t}:{HB+4*t+3}], v{vL16}, {S(SRD_G)}, s90 offen offset:{(t & 3) * 1024} sc1'); vm.issue(f'h{t}')
    ST2 = 96
    l_st2 = (f'buffer_load_dwordx4 v[{ST2}:{ST2+3}], v{vS16}, {S(SRD_G)}, s92 offen sc1', ST2 + 2)
    for t in range(28):
        vm.wait(a, f'h{t}', f' lgkmcnt({min(8, 4 * (27 - t))})')
        if t + 3 < 28: a4_read(t + 3)
        if t == 14:
            a(l_st2[0]); vm.issue('st2')
            dma_rows(SRD_W2, vO896, 95, 896, 6, 96, L_SCR, 'w2a', first=6)
        s = AS + (t % 4) * 8
        for nt in range(2):
            c = '0' if t == 0 else f'v[{A4+16*nt}:{A4+16*nt+15}]'
            a(f'v_mfma_f32_32x32x16_bf16 v[{A4+16*nt}:{A4+16*nt+15}], v[{s+4*nt}:{s+4*nt+3}], v[{HB+4*t}:{HB+4*t+3}], {c}')
    stamp(10)
    poll([l_st2], first_tag='st2')
    mean_frag(ST2, RB1, 120)
    a(f'v_rcp_f32 v121, v{ST2+1}')
    a(f'v_mul_f32 v{ST2}, {LOG2E}, v{ST2+1}')
    a('v_cvt_pk_bf16_f32 v120, v121, v121\nv_lshlrev_b32 v120, 16, v120\nv_sub_f32 v122, v121, v120')
    a(f'v_cvt_pk_bf16_f32 v{RB1+2}, v121, v122\nv_and_b32 v120, 0xffff0000, v{RB1+2}\nv_sub_f32 v122, v122, v120')
    a(f'v_cvt_pk_bf16_f32 v{RB1+3}, v122, 0')
    for nt in range(2):
        a(f'v_mfma_f32_32x32x16_bf16 v[{A4+16*nt}:{A4+16*nt+15}], v[{RA4+4*nt}:{RA4+4*nt+3}], v[{RB1}:{RB1+3}], v[{A4+16*nt}:{A4+16*nt+15}]')
    a(f's_mul_i32 s90, s{sW}, 112\ns_lshl_b32 s85, s{sTI}, 2\ns_add_u32 s90, s90, s85\ns_lshl_b32 s90, s90, 10\ns_add_u32 s90, s90, {G_ACT}')
    a(f's_lshl_b32 s91, s{sW}, 5\ns_add_u32 s91, s91, s{sTI}\ns_lshl_b32 s91, s91, 3\ns_add_u32 s91, s91, {G_FA}')
    a('v_mov_b32 v100, 2.0\nv_mov_b32 v101, 2.0\nv_mov_b32 v102, -2.0\nv_mov_b32 v103, 1.0')
    E4, T4, PK = 128, 160, 80
    for r in range(0, 32, 2):
        a(f'v_pk_mul_f32 v[{E4+r}:{E4+r+1}], v[{A4+r}:{A4+r+1}], v[{ST2}:{ST2+1}] op_sel_hi:[1,0]')
    for r in range(32): a(f'v_exp_f32 v{E4+r}, v{E4+r}')
    for r in range(0, 32, 2):
        a(f'v_pk_add_f32 v[{T4+r}:{T4+r+1}], v[{E4+r}:{E4+r+1}], v[100:101]')
        a(f'v_pk_mul_f32 v[{A4+r}:{A4+r+1}], v[{A4+r}:{A4+r+1}], v[{ST2}:{ST2+1}] op_sel:[0,1]')
    for r in range(0, 32, 2):
        a(f'v_pk_fma_f32 v[{E4+r}:{E4+r+1}], v[{E4+r}:{E4+r+1}], v[{T4+r}:{T4+r+1}], v[100:101]')
    for r in range(32): a(f'v_rcp_f32 v{E4+r}, v{E4+r}')
    for r in range(0, 32, 2):
        a(f'v_pk_fma_f32 v[{E4+r}:{E4+r+1}], v[{E4+r}:{E4+r+1}], v[102:103], v[102:103] op_sel:[0,0,1] op_sel_hi:[1,0,1]')
    for r in range(0, 32, 2):
        a(f'v_pk_mul_f32 v[{A4+r}:{A4+r+1}], v[{A4+r}:{A4+r+1}], v[{E4+r}:{E4+r+1}]')
    for r in range(16):
        a(f'v_cvt_pk_bf16_f32 v{PK+r}, v{A4+2*r}, v{A4+2*r+1}')
    stamp(11)
    publish([f'buffer_store_dwordx4 v[{PK+4*n}:{PK+4*n+3}], v{vL16}, {S(SRD_G)}, s90 offen offset:{n*1024}' for n in range(4)], 91)
    stamp(12)
    W2R = 192
    for hf, base in ((0, L_X1), (1, L_SCR)):
        a(f's_add_u32 s85, s96, {base}\nv_add_u32 v120, s85, v8\nv_add_u32 v121, s85, v9')
        for t in range(3):
            for nt in range(2):
                for u in range(2):
                    b = W2R + ((hf * 3 + t) * 2 + nt) * 4 + 2 * u
                    a(f'ds_read_b64_tr_b16 v[{b}:{b+1}], v{120+nt} offset:{t*2048 + u*1024}')
        a('s_waitcnt lgkmcnt(0)')
    a('s_barrier')
    a(f's_lshl_b32 s96, s{sW}, 14')
    dma_rows(SRD_W2, vO896, 95, 896, 16, 96, 0, 'w2b', first=12)

    A5, AS5, AB = 16, 80, 96
    a(f's_mul_i32 s85, s{sW}, 14\ns_lshr_b32 s86, s85, 2\ns_lshl_b32 s91, s{sR64}, 6\ns_add_u32 s91, s91, s86\ns_lshl_b32 s91, s91, 3\ns_add_u32 s91, s91, {G_FA}')
    a(f'v_and_b32 v10, 3, v{vLANE}\nv_bfe_u32 v11, v{vLANE}, 2, 1\nv_lshl_add_u32 v10, v11, 5, v10\nv_lshlrev_b32 v10, 3, v10')
    a(f's_mul_i32 s90, s{sRT}, 112\ns_add_u32 s90, s90, s85\ns_lshl_b32 s90, s90, 10\ns_add_u32 s90, s90, {G_ACT}')
    a(f's_xor_b32 s89, s{sRT}, 1\ns_mul_i32 s89, s89, 112\ns_add_u32 s89, s89, s85\ns_lshl_b32 s89, s89, 10\ns_add_u32 s89, s89, {G_ACT}')
    a('v_add_u32 v11, s96, v8\nv_add_u32 v12, s96, v9')
    poll([flagload(10, 's91', 240)])
    stamp(13)
    def b5_load(t):
        for rt in range(2):
            b = AB + ((t * 2 + rt) % 24) * 4
            a(f's_add_u32 s85, s{90 - rt}, {(t >> 2) * 4096}')
            a(f'buffer_load_dwordx4 v[{b}:{b+3}], v{vL16}, {S(SRD_G)}, s85 offen offset:{(t & 3) * 1024} sc1'); vm.issue(f'b{t}')
    def a5_read(t):
        s = AS5 + (t % 2) * 8
        for nt in range(2):
            for u in range(2):
                a(f'ds_read_b64_tr_b16 v[{s+4*nt+2*u}:{s+4*nt+2*u+1}], v{11+nt} offset:{(t-6)*2048 + u*1024}')
    for t in range(12): b5_load(t)
    for t in range(14):
        if t == 4: a5_read(6)
        vm.wait(a, f'b{t}')
        if t >= 6: a('s_waitcnt lgkmcnt(0)')
        if t >= 6 and t + 1 < 14: a5_read(t + 1)
        for rt in range(2):
            for nt in range(2):
                acc = A5 + (rt * 2 + nt) * 16
                c = '0' if t == 0 else f'v[{acc}:{acc+15}]'
                s = (W2R + (t * 2 + nt) * 4) if t < 6 else (AS5 + (t % 2) * 8 + 4 * nt)
                b = AB + ((t * 2 + rt) % 24) * 4
                a(f'v_mfma_f32_32x32x16_bf16 v[{acc}:{acc+15}], v[{s}:{s+3}], v[{b}:{b+3}], {c}')
        if t < 2: b5_load(12 + t)
    stamp(14)
    a('s_nop 7')
    red_addr(7, 0)
    a('s_barrier')
    for q in range(1, 8):
        for z in range(2):
            b = A5 + 8 * q + 4 * z
            a(f'ds_write_b128 v{111+q}, v[{b}:{b+3}] offset:{z*1024}')
    for r in range(4):
        a(f'v_lshlrev_b32 v{80+2*r}, 16, v{vXR+r}\nv_and_b32 v{81+2*r}, 0xffff0000, v{vXR+r}')
    for r in range(0, 8, 2):
        a(f'v_pk_add_f32 v[{A5+r}:{A5+r+1}], v[{A5+r}:{A5+r+1}], v[{80+r}:{81+r}]')
    a('s_waitcnt lgkmcnt(0)\ns_barrier')
    RD = 128
    for n in range(14):
        a(f'ds_read_b128 v[{RD+4*n}:{RD+4*n+3}], v111 offset:{n*1024}')
    for n in range(14):
        a(f's_waitcnt lgkmcnt({13 - n})')
        z = n & 1
        for r in range(0, 4, 2):
            a(f'v_pk_add_f32 v[{A5+4*z+r}:{A5+4*z+r+1}], v[{A5+4*z+r}:{A5+4*z+r+1}], v[{RD+4*n+r}:{RD+4*n+r+1}]')
    for r in range(4): a(f'v_cvt_pk_bf16_f32 v{80+r}, v{A5+2*r}, v{A5+2*r+1}')
    a('v_permlane32_swap_b32 v80, v82\nv_permlane32_swap_b32 v81, v83')
    a(f'buffer_store_dwordx4 v[80:83], v4, {S(SRD_OUT)}, s{sXO} offen')
    stamp(15)
    a(f's_or_b32 s85, s2, s{sW}\ns_cmp_lg_u32 s85, 0\ns_cbranch_scc1 L_fin')
    a('s_mov_b64 exec, 1')
    a(f'buffer_store_dwordx2 v[{vE}:{vE+1}], v{vZ}, {S(SRD_S)}, 0 offen sc1')
    a('s_mov_b64 exec, -1')
    a.label('L_fin')
    if prof:
        a.fence()
        a(f'v_writelane_b32 v{vST}, s{sTMO}, 62')
        a(f'v_writelane_b32 v{vST}, s{sMODE}, 63')
        a(f's_add_u32 s80, s36, {WS_DBG + 0x6000000}\ns_addc_u32 s81, s37, 0')
        a(f's_lshl_b32 s82, s2, 3\ns_add_u32 s82, s82, s{sW}\ns_lshl_b32 s82, s82, 8')
        a(f'v_lshl_add_u32 v249, v{vLANE}, 2, s82')
        a(f'global_store_dword v249, v{vST}, s[80:81]')
    a.label('L_end')
    a('s_endpgm')
    a.label('L_code_end')
    hdr = open('sequential_preLN__linear_kernel_hedgehog__dense_activation_mish__prompt.s.ref').read().split('\n')
    hdr = [l for l in hdr if l.startswith(';') and '@launch' not in l]
    s = '\n'.join(hdr) + '\n; @launch grid=(256,1,1) block=(512,1,1) lds=163840\n'
    s += '.amdgcn_target "amdgcn-amd-amdhsa--gfx950"\n.text\n'
    s += f'.globl {KNAME}\n.p2align 8\n.type {KNAME},@function\n{KNAME}:\n' + a.text() + '\n'
    s += f'''.section .rodata,"a"
.p2align 6
.amdhsa_kernel {KNAME}
  .amdhsa_next_free_vgpr 256
  .amdhsa_next_free_sgpr 102
  .amdhsa_accum_offset 256
  .amdhsa_group_segment_fixed_size 0
  .amdhsa_kernarg_size 88
  .amdhsa_user_sgpr_count 2
  .amdhsa_user_sgpr_kernarg_segment_ptr 1
  .amdhsa_system_sgpr_workgroup_id_x 1
.end_amdhsa_kernel
'''
    return s

if __name__ == '__main__':
    import argparse
    ap = argparse.ArgumentParser()
    ap.add_argument('-o', default='k.s'); ap.add_argument('--prof', action='store_true'); ap.add_argument('--stop', type=int, default=99)
    ap.add_argument('--slow', action='store_true')
    args = ap.parse_args()
    open(args.o, 'w').write(gen(args.prof, args.stop, args.slow))
```
